```python
import torch

def _softmax(x, axis=-1):
    return torch.softmax(x, dim=axis)
def _gelu(x):
    return torch.nn.functional.gelu(x, approximate="tanh")
def _silu(x):
    return torch.nn.functional.silu(x)
def _sigmoid(x):
    return torch.sigmoid(x)
def _layernorm(x, axis=-1, eps=1e-5):
    m = x.mean(dim=axis, keepdim=True)
    v = x.var(dim=axis, keepdim=True, unbiased=False)
    return (x - m) / torch.sqrt(v + eps)
def _scatter_add(tgt, idx, src, axis=0):
    return tgt.clone().index_add_(axis, idx, src)
def _segment_sum(src, seg, n):
    out = torch.zeros((n,) + src.shape[1:], dtype=src.dtype)
    return out.index_add_(0, seg, src)
def _pad(x, pw):
    flat = tuple(v for pair in reversed(pw) for v in pair)
    return torch.nn.functional.pad(x, flat)

kernel_name = 'recurrent_scan__mha_block_cached__geglu_ffn__prompt'

def setup_inputs():

    _w = (lambda a: (lambda t: t.to(torch.bfloat16) if t.is_floating_point() else t)(torch.as_tensor(a)))
    def _A_setup():
        B, Sq, D = 1, 2048, 576
        H, Sk, Dh = 32, 2048, 128
        return {
            "x": _w((lambda *s: torch.randn(*s, dtype=torch.bfloat16) * 0.05)(B, Sq, D)),
            "k_cache": _w((lambda *s: torch.randn(*s, dtype=torch.bfloat16) * 0.8)(B, H, Sk, Dh)),
            "v_cache": _w((lambda *s: torch.randn(*s, dtype=torch.bfloat16) * 0.2)(B, H, Sk, Dh)),
            "wq": _w((lambda *s: torch.randn(*s, dtype=torch.bfloat16) * 0.8)(D, H * Dh) * (D ** -0.5)),
            "wo": _w((lambda *s: torch.randn(*s, dtype=torch.bfloat16) * 0.2)(H * Dh, D) * ((H * Dh) ** -0.5)),
        }
    _A_in = _A_setup()

    def _B_setup():
        B, S, D, F = 1, 2048, 576, 4608
        return {
            "x": _w((lambda *s: torch.randn(*s, dtype=torch.bfloat16) * 0.05)(B, S, D)),
            "w_gate": _w((lambda *s: torch.randn(*s, dtype=torch.bfloat16) * 0.1)(D, F)),
            "w_up": _w((lambda *s: torch.randn(*s, dtype=torch.bfloat16) * 0.1)(D, F)),
            "w_down": _w((lambda *s: torch.randn(*s, dtype=torch.bfloat16) * 0.1)(F, D)),
        }
    _B_in = _B_setup()

    return {
        "A_x": _A_in["x"],
        "A_k_cache": _A_in["k_cache"],
        "A_v_cache": _A_in["v_cache"],
        "A_wq": _A_in["wq"],
        "A_wo": _A_in["wo"],
        "B_x": _B_in["x"],
        "B_w_gate": _B_in["w_gate"],
        "B_w_up": _B_in["w_up"],
        "B_w_down": _B_in["w_down"],
    }

def reference(A_x, A_k_cache, A_v_cache, A_wq, A_wo, B_x, B_w_gate, B_w_up, B_w_down):
    def _A_ref(x, k_cache, v_cache, wq, wo):
        B, Sq, D = x.shape
        H, Dh = 32, 128
        q = (lambda x, *d: x.permute(*d))((x @ wq).reshape(B, Sq, H, Dh), 0, 2, 1, 3)
        scores = torch.einsum("bhqd,bhkd->bhqk", q, k_cache) * (Dh ** -0.5)
        p = _softmax(scores, axis=-1)
        o = torch.einsum("bhqk,bhkd->bhqd", p, v_cache)
        return (lambda x, *d: x.permute(*d))(o, 0, 2, 1, 3).reshape(B, Sq, H * Dh) @ wo

    def _B_ref(x, w_gate, w_up, w_down):
        return (_gelu(x @ w_gate) * (x @ w_up)) @ w_down

    x = A_x
    xn = _layernorm(x, axis=-1)
    s = _A_ref(xn, A_k_cache, A_v_cache, A_wq, A_wo)
    g = _silu(_B_ref(xn, B_w_gate, B_w_up, B_w_down))
    return x + s * g
```

```python
import re

class Reg:
    __slots__ = ("f", "i", "n")
    def __init__(self, f, i, n=1):
        self.f, self.i, self.n = f, i, n
    def __str__(self):
        return f"{self.f}{self.i}" if self.n == 1 else f"{self.f}[{self.i}:{self.i+self.n-1}]"
    def regs(self):
        return {(self.f, self.i + k) for k in range(self.n)}
    def __getitem__(self, k):
        if isinstance(k, slice):
            a = k.start or 0
            b = self.n if k.stop is None else k.stop
            assert 0 <= a < b <= self.n
            return Reg(self.f, self.i + a, b - a)
        assert 0 <= k < self.n
        return Reg(self.f, self.i + k, 1)

def V(i, n=1): return Reg("v", i, n)
def A(i, n=1): return Reg("a", i, n)
def S(i, n=1): return Reg("s", i, n)

SPECIAL = {"vcc", "m0", "scc", "exec"}

def regs_of(x):
    if isinstance(x, Reg): return x.regs()
    if isinstance(x, Neg): return x.r.regs()
    if isinstance(x, str) and x in SPECIAL: return {x}
    return set()

class Neg:
    def __init__(self, r): self.r = r
    def __str__(self): return f"-{self.r}"

def fmt(x):
    if isinstance(x, float):
        if x in (0.5, -0.5, 1.0, -1.0, 2.0, -2.0, 4.0, -4.0): return repr(x)
        if x == 0.0: return "0"
        import struct
        return hex(struct.unpack("<I", struct.pack("<f", x))[0])
    if isinstance(x, int):
        return str(x) if -16 <= x <= 64 else hex(x & 0xFFFFFFFF)
    return str(x)

class Ins:
    __slots__ = ("t", "k", "wr", "rd", "meta", "srcc", "at", "dl", "nops", "prod", "cons", "ph")
    def __init__(self, t, k, wr=(), rd=(), meta=None):
        self.t, self.k, self.wr, self.rd, self.meta = t, k, set(wr), set(rd), meta
        self.srcc = None
        self.at = 0
        self.dl = None
        self.nops = 1
        self.prod = None
        self.cons = None
        self.ph = False
    def tag(self, prod=None, cons=None):
        self.prod = prod; self.cons = cons; return self
    def when(self, at, dl=None):
        self.at = at; self.dl = dl; return self
    def __repr__(self): return self.t

TRANS = ("v_exp_f32", "v_rcp_f32", "v_log_f32", "v_rsq_f32", "v_sqrt_f32")

def mfma(d, a, b, c):
    assert d.n == 4 and a.n == 4 and b.n == 4
    i = Ins(f"v_mfma_f32_16x16x32_bf16 {d}, {a}, {b}, {fmt(c)}", "mfma", d.regs(), a.regs() | b.regs() | regs_of(c))
    i.srcc = regs_of(c)
    i.meta = (d.regs(), a.regs() | b.regs())
    return i

def valu(op, d, *src, mod="", rmw=False):
    k = "trans" if op in TRANS else "valu"
    rd = set()
    for s in src: rd |= regs_of(s)
    wr = regs_of(d)
    if rmw or op.startswith("v_fmac"): rd |= wr
    t = f"{op} {fmt(d)}, " + ", ".join(fmt(s) for s in src) + ((" " + mod) if mod else "")
    i = Ins(t, k, wr, rd)
    if "quad_perm" in mod or "row_" in mod: i.meta = "dpp"
    if op.startswith("v_permlane"):
        i.meta = "permlane"; i.wr |= rd; i.rd |= i.wr
    if op.startswith("v_readfirstlane") or op.startswith("v_readlane"): i.meta = "readlane"
    return i

def salu(op, d, *src):
    rd = set()
    for s in src: rd |= regs_of(s)
    wr = regs_of(d)
    if op.startswith("s_cmp") or op.startswith("s_bitcmp"):
        rd |= wr; wr = {"scc"}
    elif op not in ("s_mov_b32", "s_mov_b64", "s_mul_i32", "s_cselect_b32", "s_cselect_b64", "s_movk_i32"):
        wr = wr | {"scc"}
    if op.startswith("s_cselect") or op in ("s_addc_u32", "s_subb_u32"): rd |= {"scc"}
    return Ins(f"{op} {fmt(d)}, " + ", ".join(fmt(s) for s in src), "salu", wr, rd)

def dsr(op, d, addr, off=0, meta=None):
    assert 0 <= off < 65536, off
    return Ins(f"{op} {d}, {addr}" + (f" offset:{off}" if off else ""), "ds", d.regs(), addr.regs(), meta)

def dsw(op, addr, data, off=0, meta=None):
    assert 0 <= off < 65536, off
    return Ins(f"{op} {addr}, {data}" + (f" offset:{off}" if off else ""), "dsw", (), addr.regs() | data.regs(), meta)

def _w(n): return {1: "dword", 2: "dwordx2", 3: "dwordx3", 4: "dwordx4"}[n]

def bload(d, voff, srd, soff=0, off=0, flags=""):
    assert 0 <= off < 4096
    return Ins(f"buffer_load_{_w(d.n)} {d}, {voff}, {srd}, {fmt(soff)} offen" + (f" offset:{off}" if off else "") + flags,
               "vld", d.regs(), voff.regs() | srd.regs() | regs_of(soff))

def bstore(data, voff, srd, soff=0, off=0, flags=""):
    assert 0 <= off < 4096
    i = Ins(f"buffer_store_{_w(data.n)} {data}, {voff}, {srd}, {fmt(soff)} offen" + (f" offset:{off}" if off else "") + flags,
            "vst", (), data.regs() | voff.regs() | srd.regs() | regs_of(soff))
    i.meta = data.regs() if data.n >= 3 else None
    return i

def dma(voff, srd, soff=0, off=0, meta=None, flags=""):
    assert 0 <= off < 4096
    return Ins(f"buffer_load_dwordx4 {voff}, {srd}, {fmt(soff)} offen" + (f" offset:{off}" if off else "") + flags + " lds",
               "dma", (), voff.regs() | srd.regs() | regs_of(soff) | {"m0"}, meta)

def waitvm(n):
    i = Ins(f"s_waitcnt vmcnt({n})", "wait"); i.meta = (n, None); return i
def waitlgkm(n):
    i = Ins(f"s_waitcnt lgkmcnt({n})", "wait"); i.meta = (None, n); return i
def waitboth(v, l):
    i = Ins(f"s_waitcnt vmcnt({v}) lgkmcnt({l})", "wait"); i.meta = (v, l); return i
def waitdma(pred):
    i = Ins("waitdma", "wait"); i.meta = pred; return i
def barrier(): return Ins("s_barrier", "barrier")
def nop(n):
    i = Ins(f"s_nop {n}", "nop"); i.nops = n + 1; return i
def label(name):
    i = Ins(f"{name}:", "label"); i.nops = 0; return i
def branch(op, target):
    rd = {"scc"} if "scc" in op else ({"vcc"} if "vcc" in op else ({"exec"} if "exec" in op else set()))
    return Ins(f"{op} {target}", "branch", (), rd)
def branch_back(op, target, back):
    i = branch(op, target); i.t += f"\n{back}:"; return i
def raw(t, k="salu", wr=(), rd=()):
    w = set(); r = set()
    for x in wr: w |= regs_of(x)
    for x in rd: r |= regs_of(x)
    return Ins(t, k, w, r)

VMEM = ("vld", "vst", "dma")
VALUK = ("valu", "trans")

def cost(i):
    if i.k in ("trans",) + VMEM: return 2
    if i.k in ("valu", "ds", "dsw"): return 1
    return 0


def conflicts(a, b):
    return bool((a.wr & (b.rd | b.wr)) or (a.rd & b.wr))


def schedule(mfmas, fillers, window=24, cap=2, verbose=False):
    out = []
    pend = sorted(fillers, key=lambda f: f.at)
    overflow = 0
    ng = len(mfmas)
    MEM = ("ds", "dsw") + VMEM
    for g in range(ng):
        out.append(mfmas[g])
        used = 0
        sal = []; mem = []; val = []
        for phase in (0, 1, 2):
          while True:
            pick = None
            blocked = []
            n_seen = 0
            for idx, f in enumerate(pend):
                if f.at > g: break
                forced = f.dl is not None and f.dl <= g
                isv = f.k in VALUK
                if phase == 0: ok = not isv
                elif phase == 1: ok = isv and f.dl is not None and f.dl <= g + 2
                else: ok = isv
                if ok:
                    for b in blocked:
                        if conflicts(b, f) or (b.k == f.k and f.k in ("ds", "dsw")) or (b.k in VMEM and f.k in VMEM) \
                           or (b.k in ("wait", "barrier") and f.k in ("wait", "barrier") + MEM) \
                           or (f.k in ("wait", "barrier") and b.k in ("ds", "dsw")):
                            ok = False; break
                if ok:
                    c = cost(f)
                    if c == 0:
                        dep = any(conflicts(p, f) for p in mem + val) or (f.k in ("wait", "barrier") and any(p.k in ("ds", "dsw") for p in mem))
                        if dep: ok = False
                        elif len(sal) >= 1 and not forced: ok = False
                    elif f.k in MEM:
                        dep = any(conflicts(p, f) for p in val) or (f.k == "dma" and any("m0" in p.wr for p in sal))
                        if dep: ok = False
                        elif used + c > cap and not forced: ok = False
                    else:
                        if used + c > cap and not forced: ok = False
                if ok:
                    pick = idx; break
                blocked.append(f)
                n_seen += 1
                if phase == 2 and n_seen >= window: break
            if pick is None: break
            f = pend.pop(pick)
            c = cost(f)
            if c == 0: sal.append(f)
            elif f.k in MEM: mem.append(f)
            else: val.append(f)
            used += c
        if used > cap: overflow += used - cap
        for f in pend:
            if f.at > g: break
            if f.dl is not None and f.dl <= g:
                raise RuntimeError(f"deadline missed at gap {g}: {f.t} (at={f.at}, dl={f.dl})")
        out += sal + mem + val
    if verbose or overflow:
        print(f"  schedule: {ng} gaps, overflow slots {overflow}, leftover {len(pend)}")
    return out, pend


def insert_waits(prog, hoist=True):
    out = []
    lg = []
    vm = []
    for ins in prog:
        if ins.k == "wait" and ins.t == "waitdma":
            need = -1
            for j, o in enumerate(vm):
                if o.k == "dma" and any(ins.meta(c) for _, c in o.meta): need = j
            if need < 0: continue
            ins = waitvm(len(vm) - 1 - need)
        if ins.k == "wait":
            v, l = ins.meta
            if v is not None: vm = vm[len(vm) - v:] if v < len(vm) else vm
            if v == 0: vm = []
            if l is not None: lg = lg[len(lg) - l:] if l < len(lg) else lg
            if l == 0: lg = []
            out.append(ins); continue
        touched = ins.rd | ins.wr
        for q, name in ((lg, "lg"), (vm, "vm")):
            need = -1
            for j, o in enumerate(q):
                if o.wr & touched: need = j
            if need >= 0:
                pos = len(out)
                tgt = q[need]
                if hoist and ins.k == "mfma":
                    p = len(out) - 1
                    seen = 0
                    firstpos = None
                    while p >= 0 and out[p].k not in ("label", "barrier") and out[p] is not tgt and seen < 3:
                        if out[p].k == "mfma":
                            seen += 1
                            if firstpos is None: firstpos = p + 1
                            nx = out[p + 1] if p + 1 < len(out) else None
                            if nx is None or nx.k not in ("salu", "branch", "barrier", "nop"):
                                firstpos = p + 1
                                break
                        p -= 1
                    if firstpos is not None: pos = firstpos
                cls = ("ds", "dsw") if name == "lg" else VMEM
                after = sum(1 for o in out[pos:] if o.k in cls)
                n = len(q) - 1 - need - after
                assert n >= 0
                lim = 15 if name == "lg" else 63
                n = min(n, lim)
                if pos < len(out) and out[pos].k == "wait":
                    v0, l0 = out[pos].meta
                    if name == "lg": l0 = n if l0 is None else min(l0, n)
                    else: v0 = n if v0 is None else min(v0, n)
                    out[pos] = waitboth(v0, l0) if (v0 is not None and l0 is not None) else (waitvm(v0) if v0 is not None else waitlgkm(l0))
                else:
                    out.insert(pos, waitlgkm(n) if name == "lg" else waitvm(n))
                keep = n + after
                del q[:len(q) - keep]
        if ins.k in ("ds", "dsw"): lg.append(ins)
        if ins.k in VMEM:
            vm.append(ins)
            assert len(vm) <= 63, "vmcnt overflow"
        out.append(ins)
    return out


def fix_hazards(prog, report=None):
    out = []
    nfix = 0
    def dist_back(pred, maxd):
        d = 0
        for o in reversed(out):
            if pred(o): return d
            d += o.nops
            if d >= maxd: return None
        return None
    for ins in prog:
        need = 0
        def req(pred, n):
            nonlocal need
            d = dist_back(pred, n)
            if d is not None and n - d > need: need = n - d
        k = ins.k
        if k == "mfma":
            d_regs, ab = ins.meta
            req(lambda o: o.k in VALUK and (o.wr & ins.rd), 2)
            req(lambda o: o.k == "mfma" and (o.wr & ab), 8)
            req(lambda o: o.k == "mfma" and (o.wr & ins.srcc) and o.wr != ins.srcc, 6)
            req(lambda o: o.k in VALUK and "exec" in o.wr, 4)
        if k in VALUK:
            req(lambda o: o.k == "mfma" and (o.wr & (ins.rd | ins.wr)), 8)
            req(lambda o: o.k == "mfma" and (o.srcc & ins.wr), 3)
            if k == "valu": req(lambda o: o.k == "trans" and (o.wr & ins.rd), 1)
            if ins.meta in ("dpp", "permlane"): req(lambda o: o.k in VALUK and (o.wr & ins.rd), 2)
            if ins.meta == "readlane": req(lambda o: o.k in VALUK and (o.wr & ins.rd), 1)
            sg = {r for r in ins.rd if r == "vcc" or (isinstance(r, tuple) and r[0] == "s")}
            if sg: req(lambda o: o.k in VALUK and (o.wr & sg), 2)
            req(lambda o: o.k == "vst" and o.meta and (o.meta & ins.wr), 2)
        if k in ("ds", "dsw") + VMEM:
            req(lambda o: o.k == "mfma" and (o.wr & (ins.rd | ins.wr)), 8)
            sg = {r for r in ins.rd if isinstance(r, tuple) and r[0] == "s"}
            if sg: req(lambda o: o.k in VALUK and (o.wr & sg), 5)
            if k == "dma": req(lambda o: o.k == "salu" and "m0" in o.wr, 1)
            req(lambda o: o.k == "vst" and o.meta and (o.meta & ins.wr), 1)
        if k == "salu":
            sg = {r for r in ins.rd if r == "vcc" or (isinstance(r, tuple) and r[0] == "s")}
            if sg: req(lambda o: o.k in VALUK and (o.wr & sg), 1)
        if need:
            nfix += 1
            if report is not None: report.append((len(out), need, ins.t))
            while need > 0:
                n = min(need, 16)
                out.append(nop(n - 1)); need -= n
        out.append(ins)
    return out, nfix


def check_lds(prog):
    epoch = 0
    vm = []; lg = []
    state = {}
    reads = {}
    errs = 0
    for ins in prog:
        if ins.k == "wait":
            v, l = ins.meta
            if v is not None:
                while len(vm) > v:
                    o = vm.pop(0)
                    if o.k == "dma" and o.meta:
                        for reg, cont in o.meta:
                            st = state[reg]
                            if st["content"] == cont:
                                st["out"] -= 1
                                if st["out"] == 0: st["landed"] = epoch
            if l is not None:
                while len(lg) > l:
                    o = lg.pop(0)
                    o[1] = epoch
        elif ins.k == "barrier":
            epoch += 1
        elif ins.k == "dma":
            vm.append(ins)
            for reg, cont in (ins.meta or []):
                st = state.get(reg)
                if st is None or st["content"] != cont:
                    for r in reads.get(reg, []):
                        if r[1] is None or r[1] >= epoch:
                            print(f"LDS WAR: dma {cont} into {reg} at epoch {epoch}, read {r[0].meta} done epoch {r[1]}"); errs += 1
                    reads[reg] = []
                    state[reg] = dict(content=cont, landed=None, out=1)
                else:
                    st["out"] += 1; st["landed"] = None
        elif ins.k in VMEM:
            vm.append(ins)
        elif ins.k in ("ds", "dsw"):
            e = [ins, None]
            lg.append(e)
            if ins.meta:
                reg, cont = ins.meta
                if cont is not None:
                    st = state.get(reg)
                    if st is None or st["content"] != cont or st["landed"] is None or st["landed"] >= epoch:
                        print(f"LDS RAW: read {cont} from {reg} at epoch {epoch}, state {st}"); errs += 1
                    reads.setdefault(reg, []).append(e)
        if errs > 10: break
    return errs


def check_tags(prog):
    cur = {}
    errs = 0
    for ins in prog:
        for reg, tg in (ins.cons or []):
            for r in reg.regs():
                if cur.get(r) != tg:
                    print(f"TAG: {ins.t} expects {tg} in {r}, has {cur.get(r)}"); errs += 1; break
        for r in ins.wr:
            cur[r] = ins.prod
        if errs > 10: break
    return errs


def text(prog):
    return "\n".join((i.t if i.k == "label" else " " + i.t) for i in prog)


def est_cycles(prog):
    cyc = 0
    gap = None
    for ins in prog:
        if ins.k == "mfma":
            if gap is not None: cyc += max(16, gap)
            gap = 8; free = 1
        else:
            c = {"trans": 8, "valu": 4, "ds": 4, "dsw": 4, "vld": 8, "vst": 8, "dma": 8, "label": 0}.get(ins.k, 4 * ins.nops)
            if gap is None: cyc += c
            else:
                if ins.k in ("salu", "wait", "branch", "barrier", "nop") and free and gap == 8:
                    c -= 4
                free = 0
                gap += c
    if gap is not None: cyc += max(16, gap)
    return cyc
```

```python
from fw import *
from gen_small import *

K1_LDS = 163840
KRING = 96 * 1024
VRING = 0
QSCALE = LOG2E / (128 ** 0.5)
GC0 = -2.0 * 0.7978845608028654 * LOG2E
GC1 = GC0 * 0.044715
THR = float(2 ** 30)

def gen_k1():
    p = []
    p.append(salu("s_cmp_ge_u32", S(2), 256))
    p.append(branch("s_cbranch_scc1", "L_k1_end"))
    sload(p, 4, 8); sload(p, 6, 16); sload(p, 8, 24); sload(p, 10, 48); sload(p, 12, 56); sload(p, 14, 88)
    lane = V(1)
    T0, T1, T2, T3 = V(216), V(217), V(218), V(219)
    p.append(valu("v_and_b32", lane, 63, V(0)))
    p.append(valu("v_lshrrev_b32", T0, 6, V(0)))
    sW, sJ, sMB, sA, sB = S(3), S(16), S(17), S(18), S(19)
    p.append(valu("v_readfirstlane_b32", sW, T0))
    p.append(salu("s_and_b32", sJ, S(2), 7))
    p.append(salu("s_lshl_b32", sJ, sJ, 2))
    p.append(salu("s_bfe_u32", sA, S(2), (2 << 16) | 3))
    p.append(salu("s_add_u32", sJ, sJ, sA))
    p.append(salu("s_lshr_b32", sMB, S(2), 5))
    SK, SV, SQ, SF, SWS = S(20, 4), S(24, 4), S(28, 4), S(32, 4), S(36, 4)
    p.append(salu("s_lshl_b32", sA, sJ, 19))
    p.append(raw("s_waitcnt lgkmcnt(0)", "salu"))
    srd(p, 36, 14, WS_USED)
    p.append(salu("s_cmp_ge_u32", sW, 2))
    p.append(salu("s_cselect_b32", S(10), S(12), S(10)))
    p.append(salu("s_cselect_b32", S(11), S(13), S(11)))
    srd(p, 32, 10, 576 * 9216)
    srd(p, 28, 8, 576 * 8192)
    srd(p, 20, 4, 524288, sA)
    srd(p, 24, 6, 524288, sA)
    sW1K, sCF, sCH, sCQ, sXN, sACT, sSO, sXO, sHO, sHF, sHH = (S(40 + i) for i in range(11))
    sKO, sVO, sKM, sVM, sCnt, sThr, sOO = (S(52 + i) for i in range(7))
    sRet = S(60, 2)
    p.append(salu("s_lshl_b32", sW1K, sW, 10))
    p.append(salu("s_mul_i32", sCF, sJ, 288))
    p.append(salu("s_and_b32", sA, sJ, 1))
    p.append(salu("s_cmp_eq_u32", sA, 1))
    p.append(salu("s_cselect_b32", sB, 0, 288))
    p.append(salu("s_add_u32", sCH, sCF, sB))
    p.append(salu("s_sub_u32", sCH, sCH, 32))
    p.append(salu("s_lshl_b32", sB, sA, 5))
    p.append(salu("s_add_u32", sCF, sCF, sB))
    p.append(salu("s_lshl_b32", sCQ, sJ, 8))
    p.append(salu("s_lshl_b32", sB, sMB, 2))
    p.append(salu("s_add_u32", sB, sB, sW))
    p.append(salu("s_mul_i32", sXN, sB, 73728))
    p.append(salu("s_mul_i32", sACT, sB, 2 * ACT_TB32))
    p.append(salu("s_add_u32", sACT, sACT, ACT_OFF))
    p.append(salu("s_lshl_b32", sHF, sCF, 5))
    p.append(salu("s_add_u32", sHF, sHF, sACT))
    p.append(salu("s_add_u32", sHF, sHF, 128 * 2048))
    p.append(salu("s_lshl_b32", sHH, sCH, 5))
    p.append(salu("s_add_u32", sHH, sHH, sACT))
    p.append(salu("s_add_u32", sHH, sHH, 128 * 2048))
    p.append(salu("s_lshl_b32", sB, sA, 3))
    p.append(salu("s_add_u32", sHH, sHH, sB))
    p.append(salu("s_lshl_b32", sOO, sJ, 13))
    p.append(salu("s_add_u32", sOO, sOO, sACT))
    vL16, vL16b, vDF, vDQ = V(2), V(3), V(4), V(5)
    WA = [[V(6), V(7), V(8), V(9)], [V(10), V(11), V(12), V(13)]]
    KA = V(14, 4); VA = V(18, 8); KD = V(26, 4); VD = V(30, 2)
    p.append(valu("v_lshlrev_b32", vL16, 4, lane))
    p.append(valu("v_add_u32", vL16b, ACT_TB32, vL16))
    p.append(salu("s_and_b32", sB, sW, 1))
    p.append(salu("s_lshl_b32", sB, sB, 4))
    p.append(valu("v_lshrrev_b32", T0, 2, lane))
    p.append(valu("v_add_u32", T0, sB, T0))
    p.append(valu("v_lshrrev_b32", T1, 5, lane))
    p.append(valu("v_lshlrev_b32", T1, 1, T1))
    p.append(valu("v_and_b32", T2, 3, lane))
    p.append(valu("v_xor_b32", T1, T1, T2))
    p.append(valu("v_lshlrev_b32", T1, 4, T1))
    p.append(valu("v_mul_u32_u24", T2, 9216, T0))
    p.append(valu("v_add_u32", vDF, T2, T1))
    p.append(valu("v_lshl_add_u32", vDQ, T0, 13, T1))
    p.append(salu("s_lshr_b32", sB, sW, 1))
    p.append(salu("s_lshl_b32", sB, sB, 6))
    p.append(valu("v_add_u32", vDQ, sB, vDQ))

    NSTEP = 126
    PASS = [("F", 0), ("F", 1), ("F", 2), ("F", 3), ("Q", 0), ("H", 0), ("Q", 1)]
    DW = 24
    def wdma(t):
        ps, ks = t // 18, t % 18
        sl = t % 32
        l = [salu("s_add_u32", "m0", sW1K, sl * 4096)]
        kind, idx = PASS[ps]
        if kind == "F": l.append(salu("s_add_u32", sSO, sCF, ks * 32 * 9216 + 64 * idx)); vo, sr = vDF, SF
        elif kind == "H": l.append(salu("s_add_u32", sSO, sCH, ks * 32 * 9216)); vo, sr = vDF, SF
        else: l.append(salu("s_add_u32", sSO, sCQ, ks * 32 * 8192 + 128 * idx)); vo, sr = vDQ, SQ
        l.append(dma(vo, sr, sSO, 0, [(sl, ("W", t))]))
        return l
    def xreg(ks, tb):
        f = ks * 4 + tb
        return A(4 * f, 4) if f < 58 else V(160 + 4 * (f - 58), 4)
    def xload(ks):
        l = [salu("s_add_u32", sXO, sXN, ks * 4096)]
        for tb in range(4):
            l.append(bload(xreg(ks, tb), vL16, SWS, sXO, tb * 1024).tag(prod=("X", ks, tb)))
        return l
    for t in range(6): p += wdma(t)
    NX0 = 9
    for ks in range(NX0):
        p += xload(ks)
        p += wdma(6 + ks)
    g_, r_, cc_ = T0, T1, T2
    p.append(valu("v_lshrrev_b32", g_, 4, lane))
    p.append(valu("v_bfe_u32", r_, lane, 2, 2))
    p.append(valu("v_and_b32", cc_, 3, lane))
    U0, U1, U2 = V(220), V(221), V(222)
    p.append(valu("v_lshl_add_u32", U0, g_, 3, r_))
    p.append(valu("v_lshlrev_b32", U0, 6, U0))
    p.append(valu("v_and_b32", U1, 1, g_))
    p.append(valu("v_lshl_add_u32", U2, cc_, 3, U0))
    p.append(valu("v_lshl_add_u32", WA[0][0], U1, 5, U2))
    p.append(valu("v_xor_b32", WA[0][1], 32, WA[0][0]))
    p.append(salu("s_and_b32", sB, sJ, 1))
    p.append(salu("s_lshl_b32", sB, sB, 5))
    p.append(valu("v_xor_b32", WA[0][2], sB, WA[0][0]))
    p.append(valu("v_lshlrev_b32", U1, 1, U1))
    p.append(valu("v_xor_b32", U1, U1, cc_))
    p.append(valu("v_lshl_add_u32", WA[0][3], U1, 4, U0))
    for k in range(4): p.append(valu("v_add_u32", WA[1][k], 65536, WA[0][k]))
    p.append(valu("v_and_b32", U0, 15, lane))
    p.append(valu("v_xor_b32", U1, g_, U0))
    p.append(valu("v_lshlrev_b32", U1, 4, U1))
    p.append(valu("v_lshl_add_u32", U1, U0, 8, U1))
    p.append(valu("v_add_u32", KA[0], KRING, U1))
    for ks in range(1, 4): p.append(valu("v_xor_b32", KA[ks], ks * 64, KA[0]))
    p.append(valu("v_lshrrev_b32", U1, 2, lane))
    p.append(valu("v_and_b32", U2, 7, U1))
    p.append(valu("v_lshlrev_b32", U2, 5, U2))
    p.append(valu("v_lshl_add_u32", U2, U1, 8, U2))
    p.append(valu("v_lshl_add_u32", VA[0], cc_, 3, U2))
    assert VRING == 0
    for db in range(1, 8): p.append(valu("v_xor_b32", VA[db], db * 32, VA[0]))
    p.append(valu("v_xor_b32", U1, g_, U0))
    p.append(valu("v_lshlrev_b32", U1, 4, U1))
    p.append(valu("v_lshl_add_u32", KD[0], g_, 8, U1))
    for n in range(1, 4): p.append(valu("v_xor_b32", KD[n], n * 64, KD[0]))
    p.append(valu("v_lshlrev_b32", U1, 1, g_))
    p.append(valu("v_xor_b32", U1, U1, U0))
    p.append(valu("v_lshlrev_b32", U1, 4, U1))
    p.append(valu("v_lshl_add_u32", VD[0], g_, 8, U1))
    p.append(valu("v_xor_b32", VD[1], 128, VD[0]))
    vGC1 = V(223)
    p.append(valu("v_mov_b32", vGC1, GC1))
    p.append(salu("s_mov_b32", sThr, THR))
    p.append(salu("s_lshl_b32", sA, sW, 12))
    p.append(salu("s_mov_b32", sVO, sA))
    p.append(salu("s_mov_b32", sVM, sA))
    p.append(salu("s_mov_b32", sKO, sA))
    p.append(salu("s_add_u32", sKM, sA, 4 * 8192))

    def kslot(u): return (u + 4) % 8
    def kregs(u): return [(KRING + kslot(u) * 8192) // 4096 + i for i in range(2)]
    def vregs(u): return [(VRING + (u % 8) * 8192) // 4096 + i for i in range(2)]
    def kdma(u0):
        l = [salu("s_add_u32", "m0", sKM, KRING)]
        meta = [(r, ("K", u)) for u in (u0, u0 + 1) for r in kregs(u)]
        for n in range(4): l.append(dma(KD[n], SK, sKO, n * 1024, meta))
        l.append(salu("s_add_u32", sKO, sKO, 16384))
        l.append(salu("s_add_u32", sKM, sKM, 16384))
        l.append(salu("s_and_b32", sKM, sKM, 0xffff))
        return l
    def vdma(u0):
        l = [salu("s_mov_b32", "m0", sVM)]
        meta = [(r, ("V", u)) for u in (u0, u0 + 1) for r in vregs(u)]
        for n in range(4): l.append(dma(VD[n % 2], SV, sVO, n * 1024, meta))
        l.append(salu("s_add_u32", sVO, sVO, 16384))
        l.append(salu("s_add_u32", sVM, sVM, 16384))
        l.append(salu("s_and_b32", sVM, sVM, 0xffff))
        return l

    ACC = [V(32, 64), V(96, 64)]
    QF = V(32, 64)
    NAF = 6
    AF = A(232, 24)
    GT = V(224, 16)
    HO = V(240, 8)
    OACC = A(0, 128)
    mf = []; fl = []; pre = []
    step_gap = []
    frags = []
    for t in range(NSTEP):
        ps = t // 18
        for at in ((0, 2) if PASS[ps][0] == "H" else (0, 1, 2, 3)): frags.append((t, at))
    def acc_of(ps):
        kind, idx = PASS[ps]
        if kind == "F": return ACC[ps & 1]
        if kind == "H": return V(128, 32)
        return V(32, 64) if idx == 0 else V(64, 64)
    def acc_tile(ps, at, tb):
        a = acc_of(ps)
        kind = PASS[ps][0]
        if kind == "F": i = at * 4 + tb
        elif kind == "H": i = (at >> 1) * 4 + tb
        else: i = ((at >> 1) * 4 + tb) * 2 + (at & 1)
        return a[4 * i:4 * i + 4]
    EP = 6
    frag_gap = [4 * i for i in range(len(frags))]
    first_frag_of_step = {}
    for i, (t, at) in enumerate(frags): first_frag_of_step.setdefault(t, i)
    def sgap(t): return frag_gap[first_frag_of_step[t]] if t < NSTEP else 4 * len(frags)
    RD = 4 * (NAF - 1) - 1
    for i, (t, at) in enumerate(frags):
        ps, ks = t // 18, t % 18
        a = AF[4 * (i % NAF):4 * (i % NAF) + 4]
        sl = t % 32
        win = sl // 16
        off = (sl % 16) * 4096 + (at >> 1) * 2048
        if PASS[ps][0] == "F": ar = WA[win][at & 1]
        elif PASS[ps][0] == "H": ar = WA[win][2]
        else: ar = WA[win][3]; off += 8 * (at & 1)
        rr = [dsr("ds_read_b64_tr_b16", a[0:2], ar, off, (sl, ("W", t))).tag(prod=("A", i)),
              dsr("ds_read_b64_tr_b16", a[2:4], ar, off + 256, (sl, ("W", t))).tag(prod=("A", i))]
        use = frag_gap[i]
        if t % EP == 0 and first_frag_of_step[t] == i:
            e = t // EP
            seq = [waitdma(lambda c, e=e: c[0] == "W" and c[1] < EP * (e + 1)), barrier()]
            if use - RD - 2 < 0: pre += seq
            else:
                fl.append(seq[0].when(use - RD - 2, use - RD)); fl.append(seq[1].when(use - RD - 1, use - RD + 1))
        if use - RD < 0: pre += rr
        else:
            for r in rr: fl.append(r.when(use - RD, use - 6))
        for tb in range(4):
            c = acc_tile(ps, at, tb)
            mf.append(mfma(c, a, xreg(ks, tb), c if ks else 0).tag(prod=("acc", ps, ks), cons=[(a, ("A", i)), (xreg(ks, tb), ("X", ks, tb))]))
    GA = len(mf)
    nxt = 6 + NX0
    for t in range(NSTEP):
        g = sgap(t) + 1
        l = []
        if t + NX0 < 18: l += xload(t + NX0)
        tgt = min(t + DW, NSTEP - 1)
        n = 0
        while nxt <= tgt and n < 2 and (t >= 4 or n < 1):
            l += wdma(nxt); nxt += 1; n += 1
        for ins in l:
            fl.append(ins.when(g))
            if ins.k != "salu": g += 2
    def place(l, g, step=2):
        for ins in l:
            fl.append(ins.when(g))
            if ins.k != "salu": g += step
    place(kdma(0), sgap(104)); place(kdma(2), sgap(106))
    place(vdma(0), sgap(114)); place(vdma(2), sgap(116))
    def gelu_ep(ps):
        g0 = sgap(18 * (ps + 1)) + 3
        g1 = sgap(18 * (ps + 2)) - 4
        l = []
        half = PASS[ps][0] == "H"
        cs = (0,) if half else (0, 1)
        k = 0
        for tb in range(4):
            ho = HO[4 * (tb & 1):4 * (tb & 1) + 4]
            for c in cs:
                gt = acc_tile(ps, c, tb); ut = acc_tile(ps, 2 + c, tb)
                for i in range(4):
                    tmp = GT[k % 16]; k += 1
                    g, u = gt[i], ut[i]
                    l.append(valu("v_mul_f32", tmp, g, g).tag(cons=[(g, ("acc", ps, 17))]))
                    l.append(valu("v_fmaak_f32", tmp, tmp, vGC1, GC0))
                    l.append(valu("v_mul_f32", tmp, tmp, g))
                    l.append(valu("v_exp_f32", tmp, tmp))
                    l.append(valu("v_mul_f32", u, g, u).tag(cons=[(u, ("acc", ps, 17))]))
                    l.append(valu("v_add_f32", tmp, 1.0, tmp))
                    l.append(valu("v_rcp_f32", tmp, tmp))
                    l.append(valu("v_mul_f32", u, u, tmp))
                    if i & 1:
                        l.append(valu("v_cvt_pk_bf16_f32", ho[2 * c + (i >> 1)], ut[i - 1], ut[i]))
            vo = vL16b if tb >> 1 else vL16
            if half: l.append(bstore(ho[0:2], vo, SWS, sHH, (tb & 1) * 1024))
            else:
                if tb == 0: l.append(salu("s_add_u32", sHO, sHF, PASS[ps][1] * 2048))
                l.append(bstore(ho, vo, SWS, sHO, (tb & 1) * 1024))
        n = len(l)
        for i, ins in enumerate(l):
            fl.append(ins.when(g0 + (g1 - g0) * i * 9 // (10 * n), g1))
    for ps in (0, 1, 2, 3, 5): gelu_ep(ps)
    def q_ep(ps):
        l = []
        acc = acc_of(ps)
        for m in range(8):
            for r in range(4):
                a, b = acc[8 * m + 2 * r], acc[8 * m + 2 * r + 1]
                l.append(valu("v_mul_f32", a, QSCALE, a).tag(cons=[(a, ("acc", ps, 17))]))
                l.append(valu("v_mul_f32", b, QSCALE, b))
                f = PASS[ps][1] * 8 + m
                l.append(valu("v_cvt_pk_bf16_f32", QF[4 * f + r], a, b).tag(prod=("Q", f)))
        return l
    g0 = sgap(18 * 5) + 3
    for i, ins in enumerate(q_ep(4)): fl.append(ins.when(g0 + i, sgap(18 * 6) - 4))
    g0 = sgap(18 * 6 + 8) + 1
    for i in range(128): fl.append(valu("v_accvgpr_write_b32", OACC[i], 0).when(g0 + i, GA - 1))
    bodyA, left = schedule(mf, fl, verbose=True)
    assert not left, left[:5]
    progA = p + pre + bodyA

    SB = [V(96, 32), V(128, 32)]
    PB = [V(160, 16), V(176, 16)]
    NEGM = V(192, 16)
    PS = V(208, 16)
    ET = V(224, 8)
    LS = V(232, 4)
    ONES = V(236, 4)
    CK = V(240)
    RT = V(241, 8)
    NF = 8
    FR = A(128, 4 * NF)
    def stile(u, kb, qb): return SB[u & 1][(kb * 4 + qb) * 4:(kb * 4 + qb) * 4 + 4]
    def pfrag(u, qb): return PB[u & 1][qb * 4:qb * 4 + 4]
    def otile(db, qb): return OACC[(db * 4 + qb) * 4:(db * 4 + qb) * 4 + 4]
    def qfrag(ks, qb): return QF[(ks * 4 + qb) * 4:(ks * 4 + qb) * 4 + 4]
    def kfi(u, f): return 16 * u - 8 + f
    def vfi(u, f): return 16 * u + 16 + f
    def freg(i): return FR[4 * (i % NF):4 * (i % NF) + 4]
    def kread(u, f, valid=True):
        kb, ks = f // 4, f % 4
        gi = kfi(u, f)
        return [dsr("ds_read_b128", freg(gi), KA[ks], kslot(u) * 8192 + kb * 4096,
                    (kregs(u)[kb], ("K", u) if valid else None)).tag(prod=("F", gi))]
    def vread(u, db):
        gi = vfi(u, db)
        d = freg(gi)
        return [dsr("ds_read_b64_tr_b16", d[2 * rd:2 * rd + 2], VA[db], (u % 8) * 8192 + rd * 4096,
                    (vregs(u)[rd], ("V", u))).tag(prod=("F", gi)) for rd in range(2)]
    def qk(u, czero=False):
        l = []
        for f in range(8):
            kb, ks = f // 4, f % 4
            gi = kfi(u, f)
            for qb in range(4):
                d = stile(u, kb, qb)
                c = d if ks else (0 if czero else NEGM[4 * qb:4 * qb + 4])
                l.append(mfma(d, freg(gi), qfrag(ks, qb), c).tag(prod=("S", u, ks), cons=[(freg(gi), ("F", gi)), (qfrag(ks, qb), ("Q", ks * 4 + qb))]))
        return l
    def rs(u):
        return [mfma(PS[4 * qb:4 * qb + 4], ONES, pfrag(u, qb), 0).tag(prod=("PS", u), cons=[(pfrag(u, qb), ("P", u))]) for qb in range(4)]
    def pv(u):
        l = []
        for db in range(8):
            gi = vfi(u, db)
            for qb in range(4):
                o = otile(db, qb)
                l.append(mfma(o, freg(gi), pfrag(u, qb), o).tag(cons=[(freg(gi), ("F", gi)), (pfrag(u, qb), ("P", u))]))
        return l
    def softmax(u):
        l = []
        k = 0
        for kb in range(2):
            for qb in range(4):
                s = stile(u, kb, qb)
                for h in range(2):
                    e0, e1 = ET[k % 8], ET[(k + 1) % 8]; k += 2
                    l.append(valu("v_exp_f32", e0, s[2 * h]).tag(cons=[(s[2 * h], ("S", u, 3))]))
                    l.append(valu("v_exp_f32", e1, s[2 * h + 1]).tag(cons=[(s[2 * h + 1], ("S", u, 3))]))
                    l.append(valu("v_cvt_pk_bf16_f32", pfrag(u, qb)[kb * 2 + h], e0, e1).tag(prod=("P", u)))
        return l
    def rowmax(u, qb, dst, tmp):
        s0, s1 = stile(u, 0, qb), stile(u, 1, qb)
        l = [valu("v_max3_f32", dst, s0[0], s0[1], s0[2]),
             valu("v_max3_f32", dst, dst, s0[3], s1[0]),
             valu("v_max3_f32", dst, dst, s1[1], s1[2]),
             valu("v_max_f32", dst, dst, s1[3])]
        for op in ("v_permlane16_swap_b32", "v_permlane32_swap_b32"):
            l.append(valu("v_mov_b32", tmp, dst))
            l.append(valu(op, dst, tmp))
            l.append(valu("v_max_f32", dst, dst, tmp))
        return l

    tr = []
    tr.append(waitboth(0, 0))
    tr.append(barrier())
    tr += kdma(4)
    for f in range(8): tr += kread(0, f)
    tr += q_ep(6)
    for i in range(4): tr.append(valu("v_mov_b32", ONES[i], 0x3f803f80))
    for i in range(4): tr.append(valu("v_mov_b32", LS[i], 0))
    tr += qk(0, czero=True)
    for qb in range(4):
        tr += rowmax(0, qb, RT[2 * qb], RT[2 * qb + 1])
    for qb in range(4):
        for i in range(4): tr.append(valu("v_sub_f32", NEGM[4 * qb + i], 0, RT[2 * qb]))
        for kb in range(2):
            s = stile(0, kb, qb)
            for i in range(4): tr.append(valu("v_sub_f32", s[i], s[i], RT[2 * qb]).tag(prod=("S", 0, 3)))

    NU = 64
    PG = 68
    RDA = 12
    SM0 = 24
    CHK = 35
    mf = []; fl = []; pre = []
    rare_info = {}
    NPH = 8
    G0 = NPH * PG
    def put(ins, at, dl=None, ph=False):
        ins.ph = ph
        if at + G0 >= 0: fl.append(ins.when(at + G0, None if dl is None else dl + G0))
    sm_list = {}
    for u in range(-NPH + 1, NU):
        l = softmax(u)
        sm_list[u] = l
        b0 = (u - 1) * PG + SM0
        e = 0
        for ins in l:
            if ins.k == "trans":
                at = b0 + (e * 64) // 32; e += 1
            put(ins, at, u * PG + 22 if u < NU - 1 else None, ph=u < 0)
    for n in range(-NPH, NU - 1):
        base = n * PG
        ph = n < 0
        q = qk(n + 1)
        ml = q[:24] + rs(n) + q[24:] + pv(n)
        for m_ in ml: m_.ph = ph
        mf += ml
        kuse = [base + (4 * f if f < 6 else 4 * f + 4) for f in range(8)]
        for f in range(8):
            for r in kread(n + 1, f): put(r, kuse[f] - RDA, kuse[f] - 5, ph)
        vb = base + 36
        for db in range(8):
            for r in vread(n, db): put(r, vb + 4 * db - RDA, vb + 4 * db - 5, ph)
        ck = [valu("v_max3_f32", CK, PS[0], PS[4], PS[8]).tag(cons=[(PS[0], ("PS", n)), (PS[8], ("PS", n))]),
              valu("v_max_f32", CK, CK, PS[12]).tag(cons=[(PS[12], ("PS", n))]),
              valu("v_cmp_nge_f32", "vcc", sThr, CK)]
        for ins in ck: put(ins, base + 31, base + CHK - 1, ph)
        put(branch_back("s_cbranch_vccnz", f"L_rare{n % 8}", f"L_back{n % 8}"), base + CHK, base + CHK, ph)
        for qb in range(4):
            put(valu("v_add_f32", LS[qb], LS[qb], PS[4 * qb]).tag(cons=[(PS[4 * qb], ("PS", n))]), base + CHK + 2 + 4 * qb, base + PG - 1, ph)
        if n % 2 == 0:
            b = n // 2
            g = base + 1
            for ins in vdma(2 * b + 4) + kdma(2 * b + 6):
                put(ins, g, base + PG + 50, ph)
                if ins.k != "salu": g += 12
        else:
            put(waitvm(8), base + 54, base + 54, ph)
            put(barrier(), base + 55, base + 55, ph)
    for f in range(8):
        at = (NU - 1) * PG + 4 * f - RDA
        if at < (NU - 1) * PG:
            for r in kread(NU, f, valid=False): put(r, at)
    bodyB, left = schedule(mf, fl, verbose=True)
    mi = [i for i, x in enumerate(bodyB) if x.k == "mfma"][G0]
    pre = [x for x in bodyB[:mi] if not x.ph]
    bodyB = bodyB[mi:]
    assert not any(x.ph for x in bodyB)
    n = NU - 1
    tail = [i for i in left if i.k in VALUK]
    for db in range(5): tail += vread(n, db)
    tail += rs(n)
    tail += [valu("v_max3_f32", CK, PS[0], PS[4], PS[8]), valu("v_max_f32", CK, CK, PS[12]), valu("v_cmp_nge_f32", "vcc", sThr, CK),
             nop(1), branch("s_cbranch_vccnz", "L_rare_last"), label("L_back_last")]
    for qb in range(4): tail.append(valu("v_add_f32", LS[qb], LS[qb], PS[4 * qb]))
    for qb in range(4): tail.append(valu("v_rcp_f32", LS[qb], LS[qb]))
    mf = pv(n); fl = []
    for db in range(5, 8):
        for r in vread(n, db): fl.append(r.when(max(0, 4 * (db - 5) + 0), 4 * db - 5))
    OT = V(96, 64)
    k = 0
    for m in range(4):
        for qb in range(4):
            dst = OT[(k % 8) * 8:(k % 8) * 8 + 8]; k += 1
            at = 8 * m + 4 + qb + 3
            for hh in range(2):
                o = otile(2 * m + hh, qb)
                for i in range(4):
                    fl.append(valu("v_accvgpr_read_b32", dst[4 * hh + i], o[i]).when(at))
                    fl.append(valu("v_mul_f32", dst[4 * hh + i], dst[4 * hh + i], LS[qb]).when(at))
                for i in range(2):
                    fl.append(valu("v_cvt_pk_bf16_f32", dst[2 * hh + i], dst[4 * hh + 2 * i], dst[4 * hh + 2 * i + 1]).when(at))
            if qb == 0: fl.append(salu("s_add_u32", sHO, sOO, m * 2048).when(at))
            fl.append(bstore(dst[0:4], vL16b if qb >> 1 else vL16, SWS, sHO, (qb & 1) * 1024).when(at))
    bodyC, left = schedule(mf, fl)
    tail += bodyC + left

    full = progA + tr + pre + [label("@LOOP")] + bodyB + [label("@TAIL")] + tail
    full = insert_waits(full)
    rep = []
    full, nfix = fix_hazards(full, rep)
    print("K1 nops fixed:", nfix, rep[:12])
    assert check_lds(full) == 0
    assert check_tags(full) == 0
    i0 = [i for i, x in enumerate(full) if x.t == "@LOOP:"][0]
    i1 = [i for i, x in enumerate(full) if x.t == "@TAIL:"][0]
    head, loop, tail = full[:i0], full[i0 + 1:i1], full[i1 + 1:]
    idx = [i for i, ins in enumerate(loop) if ins.k == "mfma"]
    head += loop[:idx[0]]
    cuts = [idx[PG * s] for s in range(NU - 1)] + [len(loop)]
    per = [loop[cuts[s]:cuts[s + 1]] for s in range(NU - 1)]
    for s in range(8, NU - 1):
        if text(per[s]) != text(per[s - 8]):
            import difflib
            df = [l for l in difflib.unified_diff(text(per[s - 8]).split("\n"), text(per[s]).split("\n"), lineterm="", n=0) if l[0] in "+-" and l[:3] not in ("---", "+++")]
            if s == NU - 2 and all(l.startswith("- s_waitcnt") for l in df): continue
            print("\n".join(list(difflib.unified_diff(text(per[s - 8]).split("\n"), text(per[s]).split("\n"), lineterm=""))[:40]))
            raise RuntimeError(f"period {s} not periodic")
    print("K1 est cycles: head", est_cycles(head), "periods", [est_cycles(per[s]) for s in range(8)], "tail", est_cycles(tail))
    out = head
    out.append(salu("s_mov_b32", sCnt, 8))
    out.append(branch("s_branch", "L_k1_enter"))
    out.append(label("L_k1_loop"))
    out += per[7]
    out.append(label("L_k1_enter"))
    for s in range(7): out += per[s]
    out.append(salu("s_sub_u32", sCnt, sCnt, 1))
    out.append(salu("s_cmp_lg_u32", sCnt, 0))
    out.append(branch("s_cbranch_scc1", "L_k1_loop"))
    out += tail
    out.append(label("L_k1_end"))
    out.append(raw("s_endpgm"))
    def rare_body(n, has_next):
        l = [nop(7)]
        D, Fc, TM = RT[0:4], RT[4:8], CK
        for qb in range(4):
            l += rowmax(n, qb, D[qb], TM)
            l.append(valu("v_max_f32", D[qb], 0, D[qb]))
            l.append(valu("v_exp_f32", Fc[qb], Neg(D[qb])))
            for i in range(4): l.append(valu("v_sub_f32", NEGM[4 * qb + i], NEGM[4 * qb + i], D[qb]))
            l.append(valu("v_mul_f32", LS[qb], LS[qb], Fc[qb]))
            for u in ((n, n + 1) if has_next else (n,)):
                for kb in range(2):
                    s = stile(u, kb, qb)
                    for i in range(4): l.append(valu("v_sub_f32", s[i], s[i], D[qb]))
            for db in range(8):
                o = otile(db, qb)
                for i in range(4):
                    l.append(valu("v_accvgpr_read_b32", TM, o[i]))
                    l.append(valu("v_mul_f32", TM, TM, Fc[qb]))
                    l.append(valu("v_accvgpr_write_b32", o[i], TM))
        l += softmax(n)
        l += rs(n)
        if has_next:
            done = []
            for ins in per[n]:
                if ins.k == "branch": break
                if any(ins is x for x in sm_list[n + 1]): done.append(ins)
            l += done
        l.append(nop(7))
        l, _ = fix_hazards(l)
        return l
    for r in range(8):
        out.append(label(f"L_rare{r}"))
        out.append(raw(f"s_call_b64 {sRet}, L_rsub{r & 1}", "branch"))
        out.append(branch("s_branch", f"L_back{r}"))
    for r in range(8, 16):
        assert text(rare_body(r, True)) == text(rare_body(8 + (r & 1), True))
    for par in range(2):
        out.append(label(f"L_rsub{par}"))
        out += rare_body(8 + par, True)
        out.append(raw(f"s_setpc_b64 {sRet}", "branch"))
    out.append(label("L_rare_last"))
    out += rare_body(NU - 1, False)
    out.append(branch("s_branch", "L_back_last"))
    return kernel_text("attn_kernel", out, 512, 256, 70)
```

```python
from fw import *

XN_OFF = 0
XN_SIZE = 32 * 73728
ACT_OFF = 0x400000
ACT_TB32 = 272 * 2048
ACT_SIZE = 64 * ACT_TB32
PART_OFF = ACT_OFF + ACT_SIZE
PART_SP = 128 * 36 * 1024
WS_USED = PART_OFF + 4 * PART_SP
LOG2E = 1.4426950408889634

def srd(p, d, ptr, nrec, add=None):
    if add is None:
        p.append(salu("s_mov_b32", S(d), S(ptr)))
        p.append(salu("s_mov_b32", S(d + 1), S(ptr + 1)))
    else:
        p.append(salu("s_add_u32", S(d), S(ptr), add))
        p.append(salu("s_addc_u32", S(d + 1), S(ptr + 1), 0))
    p.append(salu("s_mov_b32", S(d + 2), nrec))
    p.append(salu("s_mov_b32", S(d + 3), 0x20000))

def sload(p, d, off):
    p.append(raw(f"s_load_dwordx2 {S(d,2)}, s[0:1], {off}", "salu", [S(d, 2)], []))

def finish(p):
    p = insert_waits(p)
    rep = []
    p, n = fix_hazards(p, rep)
    return p


def kernel_text(name, prog, vgpr, accum, sgpr=102):
    t = f""".globl {name}
.p2align 8
.type {name},@function
{name}:
{text(prog)}
"""
    d = f""".p2align 6
.amdhsa_kernel {name}
  .amdhsa_next_free_vgpr {vgpr}
  .amdhsa_next_free_sgpr {sgpr}
  .amdhsa_accum_offset {accum}
  .amdhsa_group_segment_fixed_size 0
  .amdhsa_kernarg_size 96
  .amdhsa_user_sgpr_count 2
  .amdhsa_user_sgpr_kernarg_segment_ptr 1
  .amdhsa_system_sgpr_workgroup_id_x 1
.end_amdhsa_kernel
"""
    return t, d


K0_GRID = 256
def gen_k0():
    p = []
    p.append(salu("s_cmp_ge_u32", S(2), K0_GRID))
    p.append(branch("s_cbranch_scc1", "L_k0_end"))
    sload(p, 4, 0); sload(p, 6, 88)
    p.append(valu("v_lshrrev_b32", V(1), 4, V(0)))
    p.append(salu("s_lshl_b32", S(3), S(2), 3))
    p.append(valu("v_add_u32", V(1), S(3), V(1)))
    p.append(valu("v_and_b32", V(2), 15, V(0)))
    p.append(valu("v_mul_u32_u24", V(3), 1152, V(1)))
    p.append(valu("v_lshl_add_u32", V(3), V(2), 3, V(3)))
    p.append(raw("s_waitcnt lgkmcnt(0)", "salu"))
    srd(p, 8, 4, 2048 * 1152)
    srd(p, 12, 6, XN_SIZE)
    X = V(8, 18)
    for m in range(9):
        p.append(bload(X[2 * m:2 * m + 2], V(3), S(8, 4), 0, m * 128))
    p.append(valu("v_lshrrev_b32", V(4), 6, V(1)))
    p.append(valu("v_mul_u32_u24", V(4), 73728, V(4)))
    p.append(valu("v_lshrrev_b32", V(5), 3, V(2)))
    p.append(valu("v_lshl_add_u32", V(4), V(5), 12, V(4)))
    p.append(valu("v_bfe_u32", V(5), V(1), 4, 2))
    p.append(valu("v_lshl_add_u32", V(4), V(5), 10, V(4)))
    p.append(valu("v_bfe_u32", V(5), V(2), 1, 2))
    p.append(valu("v_lshl_add_u32", V(4), V(5), 8, V(4)))
    p.append(valu("v_and_b32", V(5), 15, V(1)))
    p.append(valu("v_lshl_add_u32", V(4), V(5), 4, V(4)))
    p.append(valu("v_and_b32", V(5), 1, V(2)))
    p.append(valu("v_lshl_add_u32", V(4), V(5), 3, V(4)))
    F = V(28, 36)
    for i in range(18):
        p.append(valu("v_lshlrev_b32", F[2 * i], 16, X[i]))
        p.append(valu("v_and_b32", F[2 * i + 1], 0xffff0000, X[i]))
    def reduce16(r):
        for mod in ("quad_perm:[1,0,3,2] row_mask:0xf bank_mask:0xf", "quad_perm:[2,3,0,1] row_mask:0xf bank_mask:0xf",
                    "row_half_mirror row_mask:0xf bank_mask:0xf", "row_mirror row_mask:0xf bank_mask:0xf"):
            p.append(valu("v_add_f32_dpp", r, r, r, mod=mod))
    acc = [V(64), V(65), V(66), V(67)]
    for i in range(4): p.append(valu("v_add_f32", acc[i], F[i], F[i + 4]))
    for i in range(8, 36): p.append(valu("v_add_f32", acc[i % 4], acc[i % 4], F[i]))
    p.append(valu("v_add_f32", acc[0], acc[0], acc[1]))
    p.append(valu("v_add_f32", acc[2], acc[2], acc[3]))
    p.append(valu("v_add_f32", acc[0], acc[0], acc[2]))
    reduce16(acc[0])
    mean = V(68)
    p.append(valu("v_mul_f32", mean, 1.0 / 576, acc[0]))
    T = [V(70), V(71), V(72), V(73)]
    for i in range(36):
        p.append(valu("v_sub_f32", T[i % 4], F[i], mean))
        if i < 4: p.append(valu("v_mul_f32", acc[i], T[i], T[i]))
        else: p.append(valu("v_fmac_f32", acc[i % 4], T[i % 4], T[i % 4]))
    p.append(valu("v_add_f32", acc[0], acc[0], acc[1]))
    p.append(valu("v_add_f32", acc[2], acc[2], acc[3]))
    p.append(valu("v_add_f32", acc[0], acc[0], acc[2]))
    reduce16(acc[0])
    var = V(69)
    p.append(valu("v_mul_f32", var, 1.0 / 576, acc[0]))
    def rbf(r):
        p.append(valu("v_cvt_pk_bf16_f32", r, r, r))
        p.append(valu("v_lshlrev_b32", r, 16, r))
    rbf(mean); rbf(var)
    p.append(valu("v_add_f32", var, 1e-5, var)); rbf(var)
    p.append(valu("v_sqrt_f32", var, var)); rbf(var)
    p.append(valu("v_rcp_f32", var, var))
    for i in range(18):
        a, b = F[2 * i], F[2 * i + 1]
        p.append(valu("v_sub_f32", a, a, mean))
        p.append(valu("v_sub_f32", b, b, mean))
        p.append(valu("v_cvt_pk_bf16_f32", X[i], a, b))
        p.append(valu("v_lshlrev_b32", a, 16, X[i]))
        p.append(valu("v_and_b32", b, 0xffff0000, X[i]))
        p.append(valu("v_mul_f32", a, a, var))
        p.append(valu("v_mul_f32", b, b, var))
        p.append(valu("v_cvt_pk_bf16_f32", X[i], a, b))
        if i % 2 == 1:
            m = i // 2
            p.append(salu("s_mov_b32", S(16), m * 8192))
            p.append(bstore(X[2 * m:2 * m + 2], V(4), S(12, 4), S(16), 0))
    p.append(label("L_k0_end"))
    p.append(raw("s_endpgm"))
    return kernel_text("ln_kernel", finish(p), 80, 80, 24)


K3_GRID = 576
def gen_k3():
    p = []
    p.append(salu("s_cmp_ge_u32", S(2), K3_GRID))
    p.append(branch("s_cbranch_scc1", "L_k3_end"))
    sload(p, 4, 0); sload(p, 6, 88); sload(p, 20, 72)
    p.append(valu("v_lshrrev_b32", V(1), 6, V(0)))
    p.append(valu("v_and_b32", V(2), 63, V(0)))
    p.append(valu("v_readfirstlane_b32", S(3), V(1)))
    p.append(salu("s_lshl_b32", S(22), S(2), 2))
    p.append(salu("s_add_u32", S(22), S(22), S(3)))
    p.append(salu("s_mul_hi_u32", S(23), S(22), (2**32 + 17) // 18))
    p.append(salu("s_mul_i32", S(24), S(23), 18))
    p.append(salu("s_sub_u32", S(24), S(22), S(24)))
    p.append(salu("s_lshl_b32", S(25), S(22), 11))
    p.append(valu("v_lshlrev_b32", V(3), 4, V(2)))
    p.append(valu("v_and_b32", V(4), 15, V(2)))
    p.append(valu("v_mul_u32_u24", V(4), 1152, V(4)))
    p.append(valu("v_lshrrev_b32", V(5), 4, V(2)))
    p.append(valu("v_lshl_add_u32", V(4), V(5), 3, V(4)))
    p.append(salu("s_mul_i32", S(26), S(23), 16 * 1152))
    p.append(salu("s_lshl_b32", S(27), S(24), 6))
    p.append(salu("s_add_u32", S(26), S(26), S(27)))
    p.append(raw("s_waitcnt lgkmcnt(0)", "salu"))
    srd(p, 8, 4, 2048 * 1152)
    srd(p, 12, 6, 4 * PART_SP, PART_OFF)
    srd(p, 16, 20, 2048 * 1152)
    P = V(8, 32); X = V(40, 4)
    for sp in range(4):
        if sp: p.append(salu("s_add_u32", S(25), S(25), PART_SP))
        for t in range(2):
            p.append(bload(P[(sp * 2 + t) * 4:(sp * 2 + t) * 4 + 4], V(3), S(12, 4), S(25), t * 1024))
    for t in range(2):
        p.append(bload(X[2 * t:2 * t + 2], V(4), S(8, 4), S(26), t * 32))
    E = V(44, 8); XF = V(52, 8)
    for t in range(2):
        for i in range(4):
            s0, s1, f0, f1 = (P[(sp * 2 + t) * 4 + i] for sp in range(4))
            e = E[t * 4 + i]
            p.append(valu("v_add_f32", s0, s0, s1))
            p.append(valu("v_add_f32", f0, f0, f1))
            p.append(valu("v_mul_f32", e, -LOG2E, f0))
            p.append(valu("v_exp_f32", e, e))
            p.append(valu("v_mul_f32", s0, s0, f0))
            p.append(valu("v_add_f32", e, 1.0, e))
            p.append(valu("v_rcp_f32", e, e))
            xf = XF[t * 4 + i]
            if i % 2 == 0: p.append(valu("v_lshlrev_b32", xf, 16, X[2 * t + i // 2]))
            else: p.append(valu("v_and_b32", xf, 0xffff0000, X[2 * t + i // 2]))
            p.append(valu("v_fmac_f32", xf, s0, e))
        p.append(valu("v_cvt_pk_bf16_f32", X[2 * t], XF[t * 4], XF[t * 4 + 1]))
        p.append(valu("v_cvt_pk_bf16_f32", X[2 * t + 1], XF[t * 4 + 2], XF[t * 4 + 3]))
        p.append(bstore(X[2 * t:2 * t + 2], V(4), S(16, 4), S(26), t * 32))
    p.append(label("L_k3_end"))
    p.append(raw("s_endpgm"))
    return kernel_text("fin_kernel", finish(p), 64, 64, 32)


K2_LDS = 4 * 36864
def gen_k2():
    p = []
    p.append(salu("s_cmp_ge_u32", S(2), 256))
    p.append(branch("s_cbranch_scc1", "L_k2_end"))
    sload(p, 4, 32); sload(p, 6, 64); sload(p, 20, 88)
    lane, wv = V(1), V(2)
    p.append(valu("v_and_b32", lane, 63, V(0)))
    p.append(valu("v_lshrrev_b32", wv, 6, V(0)))
    sW, sSP, sMT, sNT, sNKS, sT0, sT1 = S(3), S(22), S(23), S(24), S(25), S(26), S(27)
    p.append(valu("v_readfirstlane_b32", sW, wv))
    p.append(salu("s_and_b32", sSP, S(2), 3))
    p.append(salu("s_bfe_u32", sMT, S(2), (1 << 16) | 2))
    p.append(salu("s_lshl_b32", sMT, sMT, 3))
    p.append(salu("s_lshr_b32", sT0, S(2), 5))
    p.append(salu("s_add_u32", sMT, sMT, sT0))
    p.append(salu("s_bfe_u32", sNT, S(2), (2 << 16) | 3))
    p.append(salu("s_cmp_ge_u32", sSP, 2))
    p.append(salu("s_cselect_b32", sNKS, 72, 64))
    p.append(raw("s_waitcnt lgkmcnt(0)", "salu"))
    p.append(salu("s_cselect_b32", S(4), S(6), S(4)))
    p.append(salu("s_cselect_b32", S(5), S(7), S(5)))
    p.append(salu("s_cselect_b32", sT1, 128, 0))
    p.append(salu("s_and_b32", sT0, sSP, 1))
    p.append(salu("s_mul_i32", sT0, sT0, sNKS))
    p.append(salu("s_add_u32", sT1, sT1, sT0))
    sA, sB = S(28), S(29)
    p.append(salu("s_mul_i32", sA, sT0, 32 * 1152))
    p.append(salu("s_mul_i32", sB, sNT, 288))
    p.append(salu("s_add_u32", sA, sA, sB))
    srd(p, 8, 4, 0, sA)
    p.append(salu("s_mul_i32", S(10), sNKS, 32 * 1152))
    p.append(salu("s_sub_u32", S(10), S(10), sB))
    p.append(salu("s_lshl_b32", sA, sMT, 2))
    p.append(salu("s_add_u32", sA, sA, sW))
    p.append(salu("s_mul_i32", sB, sA, ACT_TB32))
    p.append(salu("s_lshl_b32", sT1, sT1, 11))
    p.append(salu("s_add_u32", sB, sB, sT1))
    p.append(salu("s_add_u32", sB, sB, ACT_OFF))
    srd(p, 12, 20, 0, sB)
    p.append(salu("s_lshl_b32", S(14), sNKS, 11))
    p.append(salu("s_mul_i32", sB, sSP, PART_SP))
    p.append(salu("s_mul_i32", sA, sA, 72 * 1024))
    p.append(salu("s_add_u32", sB, sB, sA))
    p.append(salu("s_mul_i32", sA, sNT, 9 * 1024))
    p.append(salu("s_add_u32", sB, sB, sA))
    p.append(salu("s_add_u32", sB, sB, PART_OFF))
    srd(p, 16, 20, (36 + 9) * 1024, sB)
    VO = V(4, 9)
    p.append(salu("s_mov_b32", sA, (2**32 + 17) // 18))
    p.append(salu("s_mul_i32", sB, sW, 32 * 1152))
    for n in range(9):
        p.append(valu("v_add_u32", V(13), 64 * n, lane))
        p.append(valu("v_mul_hi_u32", V(14), V(13), sA))
        p.append(valu("v_mul_u32_u24", V(15), 18, V(14)))
        p.append(valu("v_sub_u32", V(13), V(13), V(15)))
        p.append(valu("v_mul_u32_u24", V(14), 1152, V(14)))
        p.append(valu("v_lshl_add_u32", V(13), V(13), 4, V(14)))
        p.append(valu("v_add_u32", VO[n], sB, V(13)))
    vB = V(16)
    p.append(valu("v_lshlrev_b32", vB, 4, lane))
    RA = V(17, 4)
    p.append(valu("v_lshrrev_b32", V(13), 2, lane))
    p.append(valu("v_mul_u32_u24", V(13), 288, V(13)))
    p.append(valu("v_and_b32", V(14), 3, lane))
    p.append(valu("v_lshl_add_u32", RA[0], V(14), 3, V(13)))
    for s in range(1, 4): p.append(valu("v_add_u32", RA[s], 36864 * s, RA[0]))
    sM0, sWO, sAO, sCnt = S(30), S(31), S(32), S(33)
    p.append(salu("s_mul_i32", sM0, sW, 9216))
    p.append(salu("s_mov_b32", sWO, 0))
    p.append(salu("s_mov_b32", sAO, 0))
    p.append(salu("s_lshr_b32", sCnt, sNKS, 3))
    ACC = A(0, 72); NAF = 12; AF = A(72, 4 * NAF); BF = V(128, 128)

    def loads(st):
        l = []
        sl = st % 4
        for n in range(9):
            l.append(salu("s_add_u32", "m0", sM0, sl * 36864 + n * 1024))
            l.append(dma(VO[n], S(8, 4), sWO, 0, [(("w", sl), ("W", st))]))
            if n < 8:
                if n == 4: l.append(salu("s_add_u32", sAO, sAO, 4096))
                f = sl * 8 + n
                l.append(bload(BF[4 * f:4 * f + 4], vB, S(12, 4), sAO, (n % 4) * 1024).tag(prod=("B", st, n)))
        l.append(salu("s_add_u32", sAO, sAO, 4096))
        l.append(salu("s_add_u32", sWO, sWO, 128 * 1152))
        return l

    def aread(st, f, valid=True):
        ks, nt = f // 9, f % 9
        gi = st * 36 + f
        d = AF[4 * (gi % NAF):4 * (gi % NAF) + 4]
        off = ks * 9216 + nt * 32
        m = (("w", st % 4), ("W", st) if valid else None)
        return [dsr("ds_read_b64_tr_b16", d[0:2], RA[st % 4], off, m).tag(prod=("A", gi)),
                dsr("ds_read_b64_tr_b16", d[2:4], RA[st % 4], off + 16 * 288, m).tag(prod=("A", gi))]

    for st in range(3): p += loads(st)
    for i in range(72): p.append(valu("v_accvgpr_write_b32", ACC[i], 0))
    NST = 18
    BARG = 2 * 29
    mf = []; fl = []
    pre = []
    for st in range(NST + 1):
        base = st * 72
        bg = base - 72 + BARG
        seq = [waitlgkm(0), waitdma(lambda c, st=st: c == ("W", st)), barrier()]
        if st == 0: pre += seq[1:]
        else:
            w = waitboth(34, 0)
            fl.append(w.when(bg - 1, bg - 1)); fl.append(barrier().when(bg, bg))
        for f in range(36):
            gi = st * 36 + f
            use = base + 2 * f
            at = max(use - 2 * (NAF - 1), bg + 1 + f if f < 12 else -10**9)
            if st == NST and at >= base: continue
            rr = aread(st, f, st < NST)
            if at < 0: pre += rr
            else:
                for r in rr: fl.append(r.when(at, use - 4))
        if st == NST: break
        fl.append(label(f"@ST{st}").when(base - 1))
        for f in range(36):
            ks, nt = f // 9, f % 9
            gi = st * 36 + f
            a = AF[4 * (gi % NAF):4 * (gi % NAF) + 4]
            for tb in range(2):
                bi = (st % 4) * 8 + ks * 2 + tb
                b = BF[4 * bi:4 * bi + 4]
                c = ACC[(nt * 2 + tb) * 4:(nt * 2 + tb) * 4 + 4]
                mf.append(mfma(c, a, b, c).tag(cons=[(a, ("A", gi)), (b, ("B", st, ks * 2 + tb))]))
        l = loads(st + 3)
        g = base + 1
        for ins in l:
            fl.append(ins.when(g, base + BARG - 2))
            if ins.k != "salu": g += 3
    fl = [f for f in fl if f.k != "label"]
    body, left = schedule(mf, fl)
    assert not left
    full = insert_waits(p + pre + body)
    rep = []
    full, nfix = fix_hazards(full, rep)
    assert check_lds(full) == 0
    assert check_tags(full) == 0
    idx = [i for i, ins in enumerate(full) if ins.k == "mfma"]
    cuts = [idx[72 * s] for s in range(NST)] + [len(full)]
    stages = [full[cuts[s]:cuts[s + 1]] for s in range(NST)]
    for s in range(4, NST):
        if text(stages[s]) != text(stages[s - 4]):
            import difflib
            df = [l for l in difflib.unified_diff(text(stages[s - 4]).split("\n"), text(stages[s]).split("\n"), lineterm="", n=0) if l[0] in "+-" and l[:3] not in ("---", "+++")]
            if s == NST - 1 and all(l.startswith("- s_waitcnt") for l in df): continue
            print(df)
            raise RuntimeError(f"stage {s} not periodic")
    print("K2 stage est cycles:", [est_cycles(stages[s]) for s in range(4)], "nops fixed:", rep[:5])
    out = full[:cuts[0]]
    out.append(label("L_k2_loop"))
    out += stages[0] + stages[1]
    out.append(salu("s_sub_u32", sCnt, sCnt, 1))
    out.append(salu("s_cmp_eq_u32", sCnt, 0))
    out.append(branch("s_cbranch_scc1", "L_k2_epi"))
    out += stages[2] + stages[3]
    out.append(salu("s_sub_u32", sCnt, sCnt, 1))
    out.append(salu("s_cmp_eq_u32", sCnt, 0))
    out.append(branch("s_cbranch_scc0", "L_k2_loop"))
    out.append(label("L_k2_epi"))
    out.append(nop(7))
    for tb in range(2):
        for nt in range(9):
            c = ACC[(nt * 2 + tb) * 4:(nt * 2 + tb) * 4 + 4]
            o = (tb * 36 + nt) * 1024
            out.append(salu("s_mov_b32", sA, o & ~4095))
            out.append(bstore(c, vB, S(16, 4), sA, o & 4095))
    out.append(label("L_k2_end"))
    out.append(raw("s_endpgm"))
    return kernel_text("gemm2_kernel", out, 256 + 120, 256, 40)
```

```python
import sys
from gen_small import *
from gen_k1 import *
NAME = "recurrent_scan__mha_block_cached__geglu_ffn__prompt"
def build(path):
    ref = open(f"cdna_kernels/{NAME}.s.ref").read().split("\n")
    hdr = [l for l in ref if l.startswith(";") and "@launch" not in l and "Override" not in l and "grid=ceil" not in l]
    hdr = hdr[:13]
    ks = [gen_k0(), gen_k1()]
    out = "\n".join(hdr) + "\n"
    out += f"; @launch kernel=ln_kernel grid=({K0_GRID},1,1) block=(128,1,1) lds=0\n"
    out += f"; @launch kernel=attn_kernel grid=(256,1,1) block=(256,1,1) lds={K1_LDS}\n"
    out += '.amdgcn_target "amdgcn-amd-amdhsa--gfx950"\n.text\n'
    out += "".join(k[0] for k in ks)
    out += '.section .rodata,"a"\n'
    out += "".join(k[1] for k in ks)
    open(path, "w").write(out)
    print("wrote", path, len(out), "bytes")
if __name__ == "__main__":
    build(sys.argv[1] if len(sys.argv) > 1 else f"cdna_kernels/{NAME}.s")
```

```python
import re

class Reg:
    __slots__ = ("f", "i", "n")
    def __init__(self, f, i, n=1):
        self.f, self.i, self.n = f, i, n
    def __str__(self):
        return f"{self.f}{self.i}" if self.n == 1 else f"{self.f}[{self.i}:{self.i+self.n-1}]"
    def regs(self):
        return {(self.f, self.i + k) for k in range(self.n)}
    def __getitem__(self, k):
        if isinstance(k, slice):
            a = k.start or 0
            b = self.n if k.stop is None else k.stop
            assert 0 <= a < b <= self.n
            return Reg(self.f, self.i + a, b - a)
        assert 0 <= k < self.n
        return Reg(self.f, self.i + k, 1)

def V(i, n=1): return Reg("v", i, n)
def A(i, n=1): return Reg("a", i, n)
def S(i, n=1): return Reg("s", i, n)

SPECIAL = {"vcc", "m0", "scc", "exec"}

def regs_of(x):
    if isinstance(x, Reg): return x.regs()
    if isinstance(x, Neg): return x.r.regs()
    if isinstance(x, str) and x in SPECIAL: return {x}
    return set()

class Neg:
    def __init__(self, r): self.r = r
    def __str__(self): return f"-{self.r}"

def fmt(x):
    if isinstance(x, float):
        if x in (0.5, -0.5, 1.0, -1.0, 2.0, -2.0, 4.0, -4.0): return repr(x)
        if x == 0.0: return "0"
        import struct
        return hex(struct.unpack("<I", struct.pack("<f", x))[0])
    if isinstance(x, int):
        return str(x) if -16 <= x <= 64 else hex(x & 0xFFFFFFFF)
    return str(x)

class Ins:
    __slots__ = ("t", "k", "wr", "rd", "meta", "srcc", "at", "dl", "nops", "prod", "cons", "ph")
    def __init__(self, t, k, wr=(), rd=(), meta=None):
        self.t, self.k, self.wr, self.rd, self.meta = t, k, set(wr), set(rd), meta
        self.srcc = None
        self.at = 0
        self.dl = None
        self.nops = 1
        self.prod = None
        self.cons = None
        self.ph = False
    def tag(self, prod=None, cons=None):
        self.prod = prod; self.cons = cons; return self
    def when(self, at, dl=None):
        self.at = at; self.dl = dl; return self
    def __repr__(self): return self.t

TRANS = ("v_exp_f32", "v_rcp_f32", "v_log_f32", "v_rsq_f32", "v_sqrt_f32")

def mfma(d, a, b, c):
    assert d.n == 4 and a.n == 4 and b.n == 4
    i = Ins(f"v_mfma_f32_16x16x32_bf16 {d}, {a}, {b}, {fmt(c)}", "mfma", d.regs(), a.regs() | b.regs() | regs_of(c))
    i.srcc = regs_of(c)
    i.meta = (d.regs(), a.regs() | b.regs())
    return i

def valu(op, d, *src, mod="", rmw=False):
    k = "trans" if op in TRANS else "valu"
    rd = set()
    for s in src: rd |= regs_of(s)
    wr = regs_of(d)
    if rmw or op.startswith("v_fmac"): rd |= wr
    t = f"{op} {fmt(d)}, " + ", ".join(fmt(s) for s in src) + ((" " + mod) if mod else "")
    i = Ins(t, k, wr, rd)
    if "quad_perm" in mod or "row_" in mod: i.meta = "dpp"
    if op.startswith("v_permlane"):
        i.meta = "permlane"; i.wr |= rd; i.rd |= i.wr
    if op.startswith("v_readfirstlane") or op.startswith("v_readlane"): i.meta = "readlane"
    return i

def salu(op, d, *src):
    rd = set()
    for s in src: rd |= regs_of(s)
    wr = regs_of(d)
    if op.startswith("s_cmp") or op.startswith("s_bitcmp"):
        rd |= wr; wr = {"scc"}
    elif op not in ("s_mov_b32", "s_mov_b64", "s_mul_i32", "s_cselect_b32", "s_cselect_b64", "s_movk_i32"):
        wr = wr | {"scc"}
    if op.startswith("s_cselect") or op in ("s_addc_u32", "s_subb_u32"): rd |= {"scc"}
    return Ins(f"{op} {fmt(d)}, " + ", ".join(fmt(s) for s in src), "salu", wr, rd)

def dsr(op, d, addr, off=0, meta=None):
    assert 0 <= off < 65536, off
    return Ins(f"{op} {d}, {addr}" + (f" offset:{off}" if off else ""), "ds", d.regs(), addr.regs(), meta)

def dsw(op, addr, data, off=0, meta=None):
    assert 0 <= off < 65536, off
    return Ins(f"{op} {addr}, {data}" + (f" offset:{off}" if off else ""), "dsw", (), addr.regs() | data.regs(), meta)

def _w(n): return {1: "dword", 2: "dwordx2", 3: "dwordx3", 4: "dwordx4"}[n]

def bload(d, voff, srd, soff=0, off=0, flags=""):
    assert 0 <= off < 4096
    return Ins(f"buffer_load_{_w(d.n)} {d}, {voff}, {srd}, {fmt(soff)} offen" + (f" offset:{off}" if off else "") + flags,
               "vld", d.regs(), voff.regs() | srd.regs() | regs_of(soff))

def bstore(data, voff, srd, soff=0, off=0, flags=""):
    assert 0 <= off < 4096
    i = Ins(f"buffer_store_{_w(data.n)} {data}, {voff}, {srd}, {fmt(soff)} offen" + (f" offset:{off}" if off else "") + flags,
            "vst", (), data.regs() | voff.regs() | srd.regs() | regs_of(soff))
    i.meta = data.regs() if data.n >= 3 else None
    return i

def dma(voff, srd, soff=0, off=0, meta=None, flags=""):
    assert 0 <= off < 4096
    return Ins(f"buffer_load_dwordx4 {voff}, {srd}, {fmt(soff)} offen" + (f" offset:{off}" if off else "") + flags + " lds",
               "dma", (), voff.regs() | srd.regs() | regs_of(soff) | {"m0"}, meta)

def waitvm(n):
    i = Ins(f"s_waitcnt vmcnt({n})", "wait"); i.meta = (n, None); return i
def waitlgkm(n):
    i = Ins(f"s_waitcnt lgkmcnt({n})", "wait"); i.meta = (None, n); return i
def waitboth(v, l):
    i = Ins(f"s_waitcnt vmcnt({v}) lgkmcnt({l})", "wait"); i.meta = (v, l); return i
def waitdma(pred):
    i = Ins("waitdma", "wait"); i.meta = pred; return i
def barrier(): return Ins("s_barrier", "barrier")
def nop(n):
    i = Ins(f"s_nop {n}", "nop"); i.nops = n + 1; return i
def label(name):
    i = Ins(f"{name}:", "label"); i.nops = 0; return i
def branch(op, target):
    rd = {"scc"} if "scc" in op else ({"vcc"} if "vcc" in op else ({"exec"} if "exec" in op else set()))
    return Ins(f"{op} {target}", "branch", (), rd)
def branch_back(op, target, back):
    i = branch(op, target); i.t += f"\n{back}:"; return i
def raw(t, k="salu", wr=(), rd=()):
    w = set(); r = set()
    for x in wr: w |= regs_of(x)
    for x in rd: r |= regs_of(x)
    return Ins(t, k, w, r)

VMEM = ("vld", "vst", "dma")
VALUK = ("valu", "trans")

def cost(i):
    if i.k in ("trans",) + VMEM: return 2
    if i.k in ("valu", "ds", "dsw"): return 1
    return 0


def conflicts(a, b):
    return bool((a.wr & (b.rd | b.wr)) or (a.rd & b.wr))


def schedule(mfmas, fillers, window=24, cap=2, verbose=False, quiet=0):
    out = []
    pend = sorted(fillers, key=lambda f: f.at)
    overflow = 0
    ng = len(mfmas)
    MEM = ("ds", "dsw") + VMEM
    last_store = -10**9
    for g in range(ng):
        out.append(mfmas[g])
        used = 0
        sal = []; mem = []; val = []
        for phase in (0, 1, 2):
          while True:
            pick = None
            blocked = []
            n_seen = 0
            for idx, f in enumerate(pend):
                if f.at > g: break
                forced = f.dl is not None and f.dl <= g
                isv = f.k in VALUK
                if phase == 0: ok = not isv
                elif phase == 1: ok = isv and f.dl is not None and f.dl <= g + 2
                else: ok = isv
                if ok:
                    for b in blocked:
                        if conflicts(b, f) or (b.k == f.k and f.k in ("ds", "dsw")) or (b.k in VMEM and f.k in VMEM) \
                           or (b.k in ("wait", "barrier") and f.k in ("wait", "barrier", "blob") + MEM) \
                           or (b.k == "blob" and f.k in VMEM) \
                           or (f.k in ("wait", "barrier") and b.k in ("ds", "dsw")):
                            ok = False; break
                if ok:
                    c = cost(f)
                    if c == 0:
                        dep = any(conflicts(p, f) for p in mem + val) or (f.k in ("wait", "barrier") and any(p.k in ("ds", "dsw") for p in mem))
                        if dep: ok = False
                        elif len(sal) >= 1 and not forced: ok = False
                    elif f.k in MEM:
                        dep = any(conflicts(p, f) for p in val) or (f.k == "dma" and any("m0" in p.wr for p in sal))
                        if dep: ok = False
                        elif used + c > cap and not forced: ok = False
                        elif f.k in VMEM and g - last_store < quiet and not forced: ok = False
                    else:
                        if used + c > cap and not forced: ok = False
                if ok:
                    pick = idx; break
                blocked.append(f)
                n_seen += 1
                if phase == 2 and n_seen >= window: break
            if pick is None: break
            f = pend.pop(pick)
            c = cost(f)
            if c == 0: sal.append(f)
            elif f.k in MEM: mem.append(f)
            else: val.append(f)
            if f.k == "vst" and f.t.startswith("buffer_store"): last_store = g
            used += c
        if used > cap: overflow += used - cap
        for f in pend:
            if f.at > g: break
            if f.dl is not None and f.dl <= g:
                raise RuntimeError(f"deadline missed at gap {g}: {f.t} (at={f.at}, dl={f.dl})")
        out += sal + mem + val
    if verbose or overflow:
        print(f"  schedule: {ng} gaps, overflow slots {overflow}, leftover {len(pend)}")
    return out, pend


def insert_waits(prog, hoist=True):
    out = []
    lg = []
    vm = []
    for ins in prog:
        if ins.k == "wait" and ins.t == "waitprod":
            need = -1
            for j, o in enumerate(vm):
                if o.k == "vst" and o.prod == ins.meta: need = j
            if need < 0: continue
            ins = waitvm(len(vm) - 1 - need)
        if ins.k == "wait" and ins.t == "waitdma":
            need = -1
            for j, o in enumerate(vm):
                if o.k == "dma" and any(ins.meta(c) for _, c in o.meta): need = j
            if need < 0: continue
            ins = waitvm(len(vm) - 1 - need)
        if ins.k == "wait":
            v, l = ins.meta
            if v is not None: vm = vm[len(vm) - v:] if v < len(vm) else vm
            if v == 0: vm = []
            if l is not None: lg = lg[len(lg) - l:] if l < len(lg) else lg
            if l == 0: lg = []
            out.append(ins); continue
        touched = ins.rd | ins.wr
        for q, name in ((lg, "lg"), (vm, "vm")):
            need = -1
            for j, o in enumerate(q):
                if o.wr & touched: need = j
            if need >= 0:
                pos = len(out)
                tgt = q[need]
                if hoist and ins.k == "mfma":
                    p = len(out) - 1
                    seen = 0
                    firstpos = None
                    while p >= 0 and out[p].k not in ("label", "barrier") and out[p] is not tgt and seen < 3:
                        if out[p].k == "mfma":
                            seen += 1
                            if firstpos is None: firstpos = p + 1
                            nx = out[p + 1] if p + 1 < len(out) else None
                            if nx is None or nx.k not in ("salu", "branch", "barrier", "nop", "blob"):
                                firstpos = p + 1
                                break
                        p -= 1
                    if firstpos is not None: pos = firstpos
                cls = ("ds", "dsw") if name == "lg" else VMEM
                after = sum(1 for o in out[pos:] if o.k in cls)
                n = len(q) - 1 - need - after
                assert n >= 0
                lim = 15 if name == "lg" else 63
                n = min(n, lim)
                if pos < len(out) and out[pos].k == "wait":
                    v0, l0 = out[pos].meta
                    if name == "lg": l0 = n if l0 is None else min(l0, n)
                    else: v0 = n if v0 is None else min(v0, n)
                    out[pos] = waitboth(v0, l0) if (v0 is not None and l0 is not None) else (waitvm(v0) if v0 is not None else waitlgkm(l0))
                else:
                    out.insert(pos, waitlgkm(n) if name == "lg" else waitvm(n))
                keep = n + after
                del q[:len(q) - keep]
        if ins.k in ("ds", "dsw"): lg.append(ins)
        if ins.k in VMEM:
            if len(vm) >= 63:
                out.append(waitvm(62)); del vm[:len(vm) - 62]
            vm.append(ins)
        out.append(ins)
    return out


def fix_hazards(prog, report=None):
    out = []
    nfix = 0
    def dist_back(pred, maxd):
        d = 0
        for o in reversed(out):
            if pred(o): return d
            d += o.nops
            if d >= maxd: return None
        return None
    for ins in prog:
        need = 0
        def req(pred, n):
            nonlocal need
            d = dist_back(pred, n)
            if d is not None and n - d > need: need = n - d
        k = ins.k
        if k == "mfma":
            d_regs, ab = ins.meta
            req(lambda o: o.k in VALUK and (o.wr & ins.rd), 2)
            req(lambda o: o.k == "mfma" and (o.wr & ab), 8)
            req(lambda o: o.k == "mfma" and (o.wr & ins.srcc) and o.wr != ins.srcc, 6)
            req(lambda o: o.k in VALUK and "exec" in o.wr, 4)
        if k in VALUK:
            req(lambda o: o.k == "mfma" and (o.wr & (ins.rd | ins.wr)), 8)
            req(lambda o: o.k == "mfma" and (o.srcc & ins.wr), 3)
            if k == "valu": req(lambda o: o.k == "trans" and (o.wr & ins.rd), 1)
            if ins.meta in ("dpp", "permlane"): req(lambda o: o.k in VALUK and (o.wr & ins.rd), 2)
            if ins.meta == "readlane": req(lambda o: o.k in VALUK and (o.wr & ins.rd), 1)
            sg = {r for r in ins.rd if r == "vcc" or (isinstance(r, tuple) and r[0] == "s")}
            if sg: req(lambda o: o.k in VALUK and (o.wr & sg), 2)
            req(lambda o: o.k == "vst" and o.meta and (o.meta & ins.wr), 2)
        if k in ("ds", "dsw") + VMEM:
            req(lambda o: o.k == "mfma" and (o.wr & (ins.rd | ins.wr)), 8)
            sg = {r for r in ins.rd if isinstance(r, tuple) and r[0] == "s"}
            if sg: req(lambda o: o.k in VALUK and (o.wr & sg), 5)
            if k == "dma": req(lambda o: o.k == "salu" and "m0" in o.wr, 1)
            req(lambda o: o.k == "vst" and o.meta and (o.meta & ins.wr), 1)
        if k in ("salu", "blob"):
            sg = {r for r in ins.rd if r == "vcc" or (isinstance(r, tuple) and r[0] == "s")}
            if sg: req(lambda o: o.k in VALUK and (o.wr & sg), 1)
        if need:
            nfix += 1
            if report is not None: report.append((len(out), need, ins.t))
            while need > 0:
                n = min(need, 16)
                out.append(nop(n - 1)); need -= n
        out.append(ins)
    return out, nfix


def check_lds(prog):
    epoch = 0
    vm = []; lg = []
    state = {}
    reads = {}
    errs = 0
    for ins in prog:
        if ins.k == "wait":
            v, l = ins.meta
            if v is not None:
                while len(vm) > v:
                    o = vm.pop(0)
                    if o.k == "dma" and o.meta:
                        for reg, cont in o.meta:
                            st = state[reg]
                            if st["content"] == cont:
                                st["out"] -= 1
                                if st["out"] == 0: st["landed"] = epoch
            if l is not None:
                while len(lg) > l:
                    o = lg.pop(0)
                    o[1] = epoch
        elif ins.k == "barrier":
            epoch += 1
        elif ins.k == "dma":
            vm.append(ins)
            for reg, cont in (ins.meta or []):
                st = state.get(reg)
                if st is None or st["content"] != cont:
                    for r in reads.get(reg, []):
                        if r[1] is None or r[1] >= epoch:
                            print(f"LDS WAR: dma {cont} into {reg} at epoch {epoch}, read {r[0].meta} done epoch {r[1]}"); errs += 1
                    reads[reg] = []
                    state[reg] = dict(content=cont, landed=None, out=1)
                else:
                    st["out"] += 1; st["landed"] = None
        elif ins.k in VMEM:
            vm.append(ins)
        elif ins.k in ("ds", "dsw"):
            e = [ins, None]
            lg.append(e)
            if ins.meta:
                reg, cont = ins.meta
                if cont is not None:
                    st = state.get(reg)
                    if st is None or st["content"] != cont or st["landed"] is None or st["landed"] >= epoch:
                        print(f"LDS RAW: read {cont} from {reg} at epoch {epoch}, state {st}"); errs += 1
                    reads.setdefault(reg, []).append(e)
        if errs > 10: break
    return errs


def check_tags(prog):
    cur = {}
    errs = 0
    for ins in prog:
        for reg, tg in (ins.cons or []):
            for r in reg.regs():
                if cur.get(r) != tg:
                    print(f"TAG: {ins.t} expects {tg} in {r}, has {cur.get(r)}"); errs += 1; break
        for r in ins.wr:
            cur[r] = ins.prod
        if errs > 10: break
    return errs


def text(prog):
    return "\n".join((i.t if i.k == "label" else " " + i.t) for i in prog)


def est_cycles(prog):
    cyc = 0
    gap = None
    for ins in prog:
        if ins.k == "mfma":
            if gap is not None: cyc += max(16, gap)
            gap = 8; free = 1
        else:
            c = {"trans": 8, "valu": 4, "ds": 4, "dsw": 4, "vld": 8, "vst": 8, "dma": 8, "label": 0}.get(ins.k, 4 * ins.nops)
            if gap is None: cyc += c
            else:
                if ins.k in ("salu", "wait", "branch", "barrier", "nop") and free and gap == 8:
                    c -= 4
                free = 0
                gap += c
    if gap is not None: cyc += max(16, gap)
    return cyc
```

```python
from fw import *
from gen_small import *

K1_LDS = 163840
KRING = 96 * 1024
VRING = 0
QSCALE = LOG2E / (128 ** 0.5)
GC0 = -2.0 * 0.7978845608028654 * LOG2E
GC1 = GC0 * 0.044715
THR = float(2 ** 30)
QUIET = int(os.environ.get('QUIET', '22'))
CPF = os.environ.get('CPF', '1') == '1'
SC1 = " sc1"
FIN = os.environ.get("FIN", "s")

def gen_k1():
    p = []
    p.append(salu("s_cmp_ge_u32", S(2), 256))
    p.append(branch("s_cbranch_scc1", "L_k1_end"))
    st_ = Stamper(1)
    p += st_(True) + st_()
    sload(p, 4, 8); sload(p, 6, 16); sload(p, 8, 24); sload(p, 10, 48); sload(p, 12, 56); sload(p, 14, 88)
    lane = V(1)
    T0, T1, T2, T3 = V(216), V(217), V(218), V(219)
    p.append(valu("v_and_b32", lane, 63, V(0)))
    p.append(valu("v_lshrrev_b32", T0, 6, V(0)))
    sW, sJ, sMB, sA, sB = S(3), S(16), S(17), S(18), S(19)
    p.append(valu("v_readfirstlane_b32", sW, T0))
    p.append(salu("s_and_b32", sJ, S(2), 7))
    p.append(salu("s_lshl_b32", sJ, sJ, 2))
    p.append(salu("s_bfe_u32", sA, S(2), (2 << 16) | 3))
    p.append(salu("s_add_u32", sJ, sJ, sA))
    p.append(salu("s_lshr_b32", sMB, S(2), 5))
    SK, SV, SQ, SF, SWS = S(20, 4), S(24, 4), S(28, 4), S(32, 4), S(36, 4)
    p.append(salu("s_lshl_b32", sA, sJ, 19))
    p.append(raw("s_waitcnt lgkmcnt(0)", "salu"))
    srd(p, 36, 14, WS_USED)
    p.append(salu("s_cmp_ge_u32", sW, 2))
    p.append(salu("s_cselect_b32", S(10), S(12), S(10)))
    p.append(salu("s_cselect_b32", S(11), S(13), S(11)))
    srd(p, 32, 10, 576 * 9216)
    srd(p, 28, 8, 576 * 8192)
    srd(p, 20, 4, 524288, sA)
    srd(p, 24, 6, 524288, sA)
    sload(p, 4, 32); sload(p, 6, 64); sload(p, 8, 0); sload(p, 10, 72)
    sW1K, sCF, sCH, sCQ, sXN, sACT, sSO, sXO, sHO, sHF, sHH = (S(40 + i) for i in range(11))
    sKO, sVO, sKM, sVM, sCnt, sThr, sOO = (S(52 + i) for i in range(7))
    sRet = S(60, 2)
    p.append(salu("s_lshl_b32", sW1K, sW, 10))
    p.append(salu("s_mul_i32", sCF, sJ, 288))
    p.append(salu("s_and_b32", sA, sJ, 1))
    p.append(salu("s_cmp_eq_u32", sA, 1))
    p.append(salu("s_cselect_b32", sB, 0, 288))
    p.append(salu("s_add_u32", sCH, sCF, sB))
    p.append(salu("s_sub_u32", sCH, sCH, 32))
    p.append(salu("s_lshl_b32", sB, sA, 5))
    p.append(salu("s_add_u32", sCF, sCF, sB))
    p.append(salu("s_lshl_b32", sCQ, sJ, 8))
    p.append(salu("s_lshl_b32", sB, sMB, 2))
    p.append(salu("s_add_u32", sB, sB, sW))
    p.append(salu("s_mul_i32", sXN, sB, 73728))
    p.append(salu("s_mul_i32", sACT, sB, 2 * ACT_TB32))
    p.append(salu("s_add_u32", sACT, sACT, ACT_OFF))
    p.append(salu("s_lshl_b32", sHF, sCF, 5))
    p.append(salu("s_add_u32", sHF, sHF, sACT))
    p.append(salu("s_add_u32", sHF, sHF, 128 * 2048))
    p.append(salu("s_lshl_b32", sHH, sCH, 5))
    p.append(salu("s_add_u32", sHH, sHH, sACT))
    p.append(salu("s_add_u32", sHH, sHH, 128 * 2048))
    p.append(salu("s_lshl_b32", sB, sA, 3))
    p.append(salu("s_add_u32", sHH, sHH, sB))
    p.append(salu("s_lshl_b32", sOO, sJ, 13))
    p.append(salu("s_add_u32", sOO, sOO, sACT))
    vL16, vL16b, vDF, vDQ = V(2), V(3), V(4), V(5)
    WA = [[V(6), V(7), V(8), V(9)], [V(10), V(11), V(12), V(13)]]
    KA = V(14, 4); VA = V(18, 8); KD = V(26, 4); VD = V(30, 2)
    p.append(valu("v_lshlrev_b32", vL16, 4, lane))
    p.append(valu("v_add_u32", vL16b, ACT_TB32, vL16))
    p.append(salu("s_and_b32", sB, sW, 1))
    p.append(salu("s_lshl_b32", sB, sB, 4))
    p.append(valu("v_lshrrev_b32", T0, 2, lane))
    p.append(valu("v_add_u32", T0, sB, T0))
    p.append(valu("v_lshrrev_b32", T1, 5, lane))
    p.append(valu("v_lshlrev_b32", T1, 1, T1))
    p.append(valu("v_and_b32", T2, 3, lane))
    p.append(valu("v_xor_b32", T1, T1, T2))
    p.append(valu("v_lshlrev_b32", T1, 4, T1))
    p.append(valu("v_mul_u32_u24", T2, 9216, T0))
    p.append(valu("v_add_u32", vDF, T2, T1))
    p.append(valu("v_lshl_add_u32", vDQ, T0, 13, T1))
    p.append(salu("s_lshr_b32", sB, sW, 1))
    p.append(salu("s_lshl_b32", sB, sB, 6))
    p.append(valu("v_add_u32", vDQ, sB, vDQ))

    def code_pf(lab, nbytes, vt, st):
        if not CPF: return []
        k = code_pf.n; code_pf.n += 1
        n = -(-nbytes // (4 * 8192))
        l = [raw(f"s_getpc_b64 {st}", "salu", [st], []), label(f"L_pc{k}"),
             raw(f"s_add_u32 {st[0]}, {st[0]}, {lab}-L_pc{k}", "salu", [st[0], "scc"], [st[0]]),
             salu("s_addc_u32", st[1], st[1], 0),
             valu("v_lshlrev_b32", vt[0], 7, V(0)),
             valu("v_mov_b32", vt[1], st[1]),
             raw(f"v_add_co_u32 {vt[0]}, vcc, {st[0]}, {vt[0]}", "valu", [vt[0], "vcc"], [vt[0], st[0]]),
             raw(f"v_addc_co_u32 {vt[1]}, vcc, 0, {vt[1]}, vcc", "valu", [vt[1], "vcc"], [vt[1], "vcc"])]
        for i in range(n):
            l.append(Ins(f"global_load_dword v250, {vt[0:2]}, off", "vst", (), vt[0:2].regs()))
            if i + 1 < n:
                l.append(raw(f"v_add_co_u32 {vt[0]}, vcc, 0x8000, {vt[0]}", "valu", [vt[0], "vcc"], [vt[0]]))
                l.append(raw(f"v_addc_co_u32 {vt[1]}, vcc, 0, {vt[1]}, vcc", "valu", [vt[1], "vcc"], [vt[1], "vcc"]))
        return l
    code_pf.n = 0
    NSTEP = 126
    PASS = [("F", 0), ("F", 1), ("F", 2), ("F", 3), ("Q", 0), ("H", 0), ("Q", 1)]
    DW = int(os.environ.get("DW", "20"))
    EPL = int(os.environ.get("EPL", "9"))
    EB = [0, 3, 6, 9, 12, 15, 18, 22] + list(range(27, NSTEP, EPL))
    def wdma(t):
        ps, ks = t // 18, t % 18
        sl = t % 32
        l = [salu("s_add_u32", "m0", sW1K, sl * 4096)]
        kind, idx = PASS[ps]
        if kind == "F": l.append(salu("s_add_u32", sSO, sCF, ks * 32 * 9216 + 64 * idx)); vo, sr = vDF, SF
        elif kind == "H": l.append(salu("s_add_u32", sSO, sCH, ks * 32 * 9216)); vo, sr = vDF, SF
        else: l.append(salu("s_add_u32", sSO, sCQ, ks * 32 * 8192 + 128 * idx)); vo, sr = vDQ, SQ
        l.append(dma(vo, sr, sSO, 0, [(sl, ("W", t))]))
        return l
    def xreg(ks, tb):
        f = ks * 4 + tb
        return A(4 * f, 4) if f < 58 else V(160 + 4 * (f - 58), 4)
    def xload(ks):
        l = [salu("s_add_u32", sXO, sXN, ks * 4096)]
        for tb in range(4):
            l.append(bload(xreg(ks, tb), vL16, SWS, sXO, tb * 1024).tag(prod=("X", ks, tb)))
        return l
    NX0 = int(os.environ.get("NX0", "7"))
    for t in range(3): p += wdma(t)
    for ks in range(NX0):
        p += xload(ks)
        if ks < 6: p += wdma(3 + ks)
    NW0 = 3 + min(NX0, 6)
    p += code_pf("L_pfa", 64 * 1024, V(244, 3), S(62, 2))
    p.append(label("L_pfa"))
    g_, r_, cc_ = T0, T1, T2
    p.append(valu("v_lshrrev_b32", g_, 4, lane))
    p.append(valu("v_bfe_u32", r_, lane, 2, 2))
    p.append(valu("v_and_b32", cc_, 3, lane))
    U0, U1, U2 = V(220), V(221), V(222)
    p.append(valu("v_lshl_add_u32", U0, g_, 3, r_))
    p.append(valu("v_lshlrev_b32", U0, 6, U0))
    p.append(valu("v_and_b32", U1, 1, g_))
    p.append(valu("v_lshl_add_u32", U2, cc_, 3, U0))
    p.append(valu("v_lshl_add_u32", WA[0][0], U1, 5, U2))
    p.append(valu("v_xor_b32", WA[0][1], 32, WA[0][0]))
    p.append(salu("s_and_b32", sB, sJ, 1))
    p.append(salu("s_lshl_b32", sB, sB, 5))
    p.append(valu("v_xor_b32", WA[0][2], sB, WA[0][0]))
    p.append(valu("v_lshlrev_b32", U1, 1, U1))
    p.append(valu("v_xor_b32", U1, U1, cc_))
    p.append(valu("v_lshl_add_u32", WA[0][3], U1, 4, U0))
    for k in range(4): p.append(valu("v_add_u32", WA[1][k], 65536, WA[0][k]))
    p.append(valu("v_and_b32", U0, 15, lane))
    p.append(valu("v_xor_b32", U1, g_, U0))
    p.append(valu("v_lshlrev_b32", U1, 4, U1))
    p.append(valu("v_lshl_add_u32", U1, U0, 8, U1))
    p.append(valu("v_add_u32", KA[0], KRING, U1))
    for ks in range(1, 4): p.append(valu("v_xor_b32", KA[ks], ks * 64, KA[0]))
    p.append(valu("v_lshrrev_b32", U1, 2, lane))
    p.append(valu("v_and_b32", U2, 7, U1))
    p.append(valu("v_lshlrev_b32", U2, 5, U2))
    p.append(valu("v_lshl_add_u32", U2, U1, 8, U2))
    p.append(valu("v_lshl_add_u32", VA[0], cc_, 3, U2))
    assert VRING == 0
    for db in range(1, 8): p.append(valu("v_xor_b32", VA[db], db * 32, VA[0]))
    p.append(valu("v_xor_b32", U1, g_, U0))
    p.append(valu("v_lshlrev_b32", U1, 4, U1))
    p.append(valu("v_lshl_add_u32", KD[0], g_, 8, U1))
    for n in range(1, 4): p.append(valu("v_xor_b32", KD[n], n * 64, KD[0]))
    p.append(valu("v_lshlrev_b32", U1, 1, g_))
    p.append(valu("v_xor_b32", U1, U1, U0))
    p.append(valu("v_lshlrev_b32", U1, 4, U1))
    p.append(valu("v_lshl_add_u32", VD[0], g_, 8, U1))
    p.append(valu("v_xor_b32", VD[1], 128, VD[0]))
    vGC1 = V(223)
    p.append(valu("v_mov_b32", vGC1, GC1))
    p.append(salu("s_mov_b32", sThr, THR))
    p.append(salu("s_lshl_b32", sA, sW, 12))
    p.append(salu("s_mov_b32", sVO, sA))
    p.append(salu("s_mov_b32", sVM, sA))
    p.append(salu("s_mov_b32", sKO, sA))
    p.append(salu("s_add_u32", sKM, sA, 4 * 8192))

    def kslot(u): return (u + 4) % 8
    def kregs(u): return [(KRING + kslot(u) * 8192) // 4096 + i for i in range(2)]
    def vregs(u): return [(VRING + (u % 8) * 8192) // 4096 + i for i in range(2)]
    def kdma(u0):
        l = [salu("s_add_u32", "m0", sKM, KRING)]
        meta = [(r, ("K", u)) for u in (u0, u0 + 1) for r in kregs(u)]
        for n in range(4): l.append(dma(KD[n], SK, sKO, n * 1024, meta))
        l.append(salu("s_add_u32", sKO, sKO, 16384))
        l.append(salu("s_add_u32", sKM, sKM, 16384))
        l.append(salu("s_and_b32", sKM, sKM, 0xffff))
        return l
    def vdma(u0):
        l = [salu("s_mov_b32", "m0", sVM)]
        meta = [(r, ("V", u)) for u in (u0, u0 + 1) for r in vregs(u)]
        for n in range(4): l.append(dma(VD[n % 2], SV, sVO, n * 1024, meta))
        l.append(salu("s_add_u32", sVO, sVO, 16384))
        l.append(salu("s_add_u32", sVM, sVM, 16384))
        l.append(salu("s_and_b32", sVM, sVM, 0xffff))
        return l

    ACC = [V(32, 64), V(96, 64)]
    QF = V(32, 64)
    NAF = 6
    AF = A(232, 24)
    GT = V(224, 16)
    HO = V(240, 8)
    OACC = A(0, 128)
    mf = []; fl = []; pre = []
    step_gap = []
    frags = []
    for t in range(NSTEP):
        ps = t // 18
        for at in ((0, 2) if PASS[ps][0] == "H" else (0, 1, 2, 3)): frags.append((t, at))
    def acc_of(ps):
        kind, idx = PASS[ps]
        if kind == "F": return ACC[ps & 1]
        if kind == "H": return V(128, 32)
        return V(32, 64) if idx == 0 else V(64, 64)
    def acc_tile(ps, at, tb):
        a = acc_of(ps)
        kind = PASS[ps][0]
        if kind == "F": i = at * 4 + tb
        elif kind == "H": i = (at >> 1) * 4 + tb
        else: i = ((at >> 1) * 4 + tb) * 2 + (at & 1)
        return a[4 * i:4 * i + 4]
    EP = 6
    frag_gap = [4 * i for i in range(len(frags))]
    first_frag_of_step = {}
    for i, (t, at) in enumerate(frags): first_frag_of_step.setdefault(t, i)
    def sgap(t): return frag_gap[first_frag_of_step[t]] if t < NSTEP else 4 * len(frags)
    RD = 4 * (NAF - 1) - 1
    for i, (t, at) in enumerate(frags):
        ps, ks = t // 18, t % 18
        a = AF[4 * (i % NAF):4 * (i % NAF) + 4]
        sl = t % 32
        win = sl // 16
        off = (sl % 16) * 4096 + (at >> 1) * 2048
        if PASS[ps][0] == "F": ar = WA[win][at & 1]
        elif PASS[ps][0] == "H": ar = WA[win][2]
        else: ar = WA[win][3]; off += 8 * (at & 1)
        rr = [dsr("ds_read_b64_tr_b16", a[0:2], ar, off, (sl, ("W", t))).tag(prod=("A", i)),
              dsr("ds_read_b64_tr_b16", a[2:4], ar, off + 256, (sl, ("W", t))).tag(prod=("A", i))]
        use = frag_gap[i]
        if t in EB and first_frag_of_step[t] == i:
            e = EB.index(t)
            lim = EB[e + 1] if e + 1 < len(EB) else NSTEP
            lastep = e + 1 == len(EB)
            seq = [waitdma(lambda c, lim=lim, lastep=lastep: (c[0] == "W" and c[1] < lim) or (lastep and (c[0] == "K" or c == ("V", 0)))), barrier()]
            if use - RD - 2 < 0: pre += seq
            else:
                fl.append(seq[0].when(use - RD - 2, use - RD)); fl.append(seq[1].when(use - RD - 1, use - RD + 1))
        if use - RD < 0: pre += rr
        else:
            for r in rr: fl.append(r.when(use - RD, use - 6))
        for tb in range(4):
            c = acc_tile(ps, at, tb)
            mf.append(mfma(c, a, xreg(ks, tb), c if ks else 0).tag(prod=("acc", ps, ks), cons=[(a, ("A", i)), (xreg(ks, tb), ("X", ks, tb))]))
    GA = len(mf)
    nxt = NW0
    for t in range(NSTEP):
        g = sgap(t) + 1
        l = []
        if t + NX0 < 18: l += xload(t + NX0)
        tgt = min(t + DW, NSTEP - 1)
        n = 0
        while nxt <= tgt and n < (2 if t + NX0 >= 18 else 1):
            l += wdma(nxt); nxt += 1; n += 1
        for ins in l:
            fl.append(ins.when(g))
            if ins.k != "salu": g += 3
    def place(l, g, step=2):
        for ins in l:
            fl.append(ins.when(g))
            if ins.k != "salu": g += step
    place(kdma(0), sgap(107), 4); place(kdma(2), sgap(108) + 8, 4)
    place(vdma(0), sgap(110), 4); place(vdma(2), sgap(119), 4)
    def gelu_ep(ps):
        g0 = sgap(18 * (ps + 1)) + 3
        g1 = sgap(18 * (ps + 2)) - 4
        l = []
        half = PASS[ps][0] == "H"
        cs = (0,) if half else (0, 1)
        k = 0
        for tb in range(4):
            ho = HO[4 * (tb & 1):4 * (tb & 1) + 4]
            for c in cs:
                gt = acc_tile(ps, c, tb); ut = acc_tile(ps, 2 + c, tb)
                for i in range(4):
                    tmp = GT[k % 16]; k += 1
                    g, u = gt[i], ut[i]
                    l.append(valu("v_mul_f32", tmp, g, g).tag(cons=[(g, ("acc", ps, 17))]))
                    l.append(valu("v_fmaak_f32", tmp, tmp, vGC1, GC0))
                    l.append(valu("v_mul_f32", tmp, tmp, g))
                    l.append(valu("v_exp_f32", tmp, tmp))
                    l.append(valu("v_mul_f32", u, g, u).tag(cons=[(u, ("acc", ps, 17))]))
                    l.append(valu("v_add_f32", tmp, 1.0, tmp))
                    l.append(valu("v_rcp_f32", tmp, tmp))
                    l.append(valu("v_mul_f32", u, u, tmp))
                    if i & 1:
                        l.append(valu("v_cvt_pk_bf16_f32", ho[2 * c + (i >> 1)], ut[i - 1], ut[i]))
            vo = vL16b if tb >> 1 else vL16
            if half: l.append(bstore(ho[0:2], vo, SWS, sHH, (tb & 1) * 1024, SC1))
            else:
                if tb == 0: l.append(salu("s_add_u32", sHO, sHF, PASS[ps][1] * 2048))
                l.append(bstore(ho, vo, SWS, sHO, (tb & 1) * 1024, SC1))
        n = len(l)
        for i, ins in enumerate(l):
            fl.append(ins.when(g0 + (g1 - g0) * i * 9 // (10 * n), g1))
    for ps in (0, 1, 2, 3, 5): gelu_ep(ps)
    def q_ep(ps):
        l = []
        acc = acc_of(ps)
        for m in range(8):
            for r in range(4):
                a, b = acc[8 * m + 2 * r], acc[8 * m + 2 * r + 1]
                l.append(valu("v_mul_f32", a, QSCALE, a).tag(cons=[(a, ("acc", ps, 17))]))
                l.append(valu("v_mul_f32", b, QSCALE, b))
                f = PASS[ps][1] * 8 + m
                l.append(valu("v_cvt_pk_bf16_f32", QF[4 * f + r], a, b).tag(prod=("Q", f)))
        return l
    g0 = sgap(18 * 5) + 3
    for i, ins in enumerate(q_ep(4)): fl.append(ins.when(g0 + i, sgap(18 * 6) - 4))
    g0 = sgap(18 * 6 + 8) + 1
    for i in range(128): fl.append(valu("v_accvgpr_write_b32", OACC[i], 0).when(g0 + i, GA - 1))
    SB = [V(128, 32), V(96, 32)]
    PB = [V(160, 16), V(176, 16)]
    NEGM = V(192, 16)
    PS = V(208, 16)
    ET = V(224, 8)
    LS = V(232, 4)
    ONES = V(236, 4)
    CK = V(240)
    RT = V(241, 8)
    NF = 8
    FR = A(128, 4 * NF)
    def stile(u, kb, qb): return SB[u & 1][(kb * 4 + qb) * 4:(kb * 4 + qb) * 4 + 4]
    def pfrag(u, qb): return PB[u & 1][qb * 4:qb * 4 + 4]
    def otile(db, qb): return OACC[(db * 4 + qb) * 4:(db * 4 + qb) * 4 + 4]
    def qfrag(ks, qb): return QF[(ks * 4 + qb) * 4:(ks * 4 + qb) * 4 + 4]
    def kfi(u, f): return 16 * u - 8 + f
    def vfi(u, f): return 16 * u + 16 + f
    def freg(i): return FR[4 * (i % NF):4 * (i % NF) + 4]
    def kread(u, f, valid=True):
        kb, ks = f // 4, f % 4
        gi = kfi(u, f)
        return [dsr("ds_read_b128", freg(gi), KA[ks], kslot(u) * 8192 + kb * 4096,
                    (kregs(u)[kb], ("K", u) if valid else None)).tag(prod=("F", gi))]
    def vread(u, db):
        gi = vfi(u, db)
        d = freg(gi)
        return [dsr("ds_read_b64_tr_b16", d[2 * rd:2 * rd + 2], VA[db], (u % 8) * 8192 + rd * 4096,
                    (vregs(u)[rd], ("V", u))).tag(prod=("F", gi)) for rd in range(2)]
    def qk(u, czero=False):
        l = []
        for f in range(8):
            kb, ks = f // 4, f % 4
            gi = kfi(u, f)
            for qb in range(4):
                d = stile(u, kb, qb)
                c = d if ks else (0 if czero else NEGM[4 * qb:4 * qb + 4])
                l.append(mfma(d, freg(gi), qfrag(ks, qb), c).tag(prod=("S", u, ks), cons=[(freg(gi), ("F", gi)), (qfrag(ks, qb), ("Q", ks * 4 + qb))]))
        return l
    def rs(u):
        return [mfma(PS[4 * qb:4 * qb + 4], ONES, pfrag(u, qb), 0).tag(prod=("PS", u), cons=[(pfrag(u, qb), ("P", u))]) for qb in range(4)]
    def pv(u):
        l = []
        for db in range(8):
            gi = vfi(u, db)
            for qb in range(4):
                o = otile(db, qb)
                l.append(mfma(o, freg(gi), pfrag(u, qb), o).tag(cons=[(freg(gi), ("F", gi)), (pfrag(u, qb), ("P", u))]))
        return l
    def softmax(u):
        l = []
        k = 0
        for kb in range(2):
            for qb in range(4):
                s = stile(u, kb, qb)
                for h in range(2):
                    e0, e1 = ET[k % 8], ET[(k + 1) % 8]; k += 2
                    l.append(valu("v_exp_f32", e0, s[2 * h]).tag(cons=[(s[2 * h], ("S", u, 3))]))
                    l.append(valu("v_exp_f32", e1, s[2 * h + 1]).tag(cons=[(s[2 * h + 1], ("S", u, 3))]))
                    l.append(valu("v_cvt_pk_bf16_f32", pfrag(u, qb)[kb * 2 + h], e0, e1).tag(prod=("P", u)))
        return l
    def rowmax(u, qb, dst, tmp):
        s0, s1 = stile(u, 0, qb), stile(u, 1, qb)
        l = [valu("v_max3_f32", dst, s0[0], s0[1], s0[2]),
             valu("v_max3_f32", dst, dst, s0[3], s1[0]),
             valu("v_max3_f32", dst, dst, s1[1], s1[2]),
             valu("v_max_f32", dst, dst, s1[3])]
        for op in ("v_permlane16_swap_b32", "v_permlane32_swap_b32"):
            l.append(valu("v_mov_b32", tmp, dst))
            l.append(valu(op, dst, tmp))
            l.append(valu("v_max_f32", dst, dst, tmp))
        return l

    sT, sTO = S(62), S(63)
    VT = V(249)
    nlab = [0]
    def signal(sflag):
        n = nlab[0]; nlab[0] += 1
        return [salu("s_cmp_lg_u32", sW, 0), branch("s_cbranch_scc1", f"L_sg{n}"),
                raw("s_mov_b64 exec, 1", "salu"), valu("v_mov_b32", VT, 1),
                Ins(f"buffer_atomic_add {VT}, off, {SWS}, {sflag}", "salu", (), VT.regs()),
                raw("s_mov_b64 exec, -1", "salu"), label(f"L_sg{n}")]
    def poll(sflag, count):
        n = nlab[0]; nlab[0] += 1
        return [salu("s_mov_b32", sTO, 0x100000), label(f"L_pl{n}"),
                Ins(f"buffer_load_dword {VT}, off, {SWS}, {sflag} sc1", "salu", VT.regs(), ()),
                waitvm(0), valu("v_readfirstlane_b32", sT, VT), nop(0),
                salu("s_cmp_ge_u32", sT, count), branch("s_cbranch_scc1", f"L_pd{n}"),
                raw("s_sleep 1", "salu"), salu("s_sub_u32", sTO, sTO, 1), branch("s_cbranch_scc0", f"L_pl{n}"),
                label(f"L_pd{n}")]

    for f in range(8):
        for r in kread(0, f): fl.append(r.when(sgap(18 * 6 + 14) + 2 + 4 * f, GA - 6))
    q0 = qk(0, czero=True)
    q0 = [q0[(kb * 4 + ks) * 4 + qb] for ks in range(4) for kb in range(2) for qb in range(4)]
    mf += q0[:16]
    for i, ins in enumerate(q_ep(6)): fl.append(ins.when(GA + 1))
    pre += st_()
    for ps in ((1,) if os.environ.get("STT") or os.environ.get("STL") else range(1, 7)):
        for x in st_(): fl.append(x.when(sgap(18 * ps)))
    bodyA, left = schedule(mf, fl, verbose=True, quiet=QUIET)
    assert all(i.k == "valu" for i in left), left[:5]
    progA = p + pre + bodyA
    tr = []
    tr += st_()
    tr += left
    sQ, sMT, sNT, sFI, sFH, sFW, sPS, sPD = sCF, sCH, sCQ, sXN, sSO, sXO, sHF, sHH
    SPS, SPD = SQ, SF
    F_H, F_O, F_W, F_F, F_S = (FLAG_OFF + 128 * x for x in (0, 32, 64, 80, 144))
    vPS, vPD = V(4), V(5)
    PKB = [V(6, 4), V(10, 4)]
    sc = []
    sc.append(salu("s_bfe_u32", sQ, sJ, (2 << 16) | 2))
    sc.append(salu("s_lshr_b32", sA, sJ, 4))
    sc.append(salu("s_lshl_b32", sMT, sMB, 1))
    sc.append(salu("s_add_u32", sMT, sMT, sA))
    sc.append(salu("s_and_b32", sNT, sJ, 3))
    sc.append(salu("s_lshl_b32", sB, sMB, 2))
    sc.append(salu("s_lshr_b32", sA, sJ, 3))
    sc.append(salu("s_add_u32", sA, sA, sB))
    sc.append(salu("s_lshl_b32", sFH, sA, 7))
    sc.append(salu("s_add_u32", sFH, sFH, F_H))
    sc.append(salu("s_add_u32", sA, sB, sQ))
    sc.append(salu("s_lshl_b32", sFI, sA, 7))
    sc.append(salu("s_add_u32", sFI, sFI, F_H))
    sc.append(salu("s_lshl_b32", sT, sQ, 2))
    sc.append(salu("s_add_u32", sT, sT, sNT))
    sc.append(salu("s_lshl_b32", sFW, sT, 7))
    sc.append(salu("s_add_u32", sFW, sFW, F_W))
    sc.append(salu("s_mul_i32", sTO, sT, WPK_G))
    sc.append(salu("s_add_u32", sTO, sTO, WPK_OFF))
    sc.append(salu("s_mov_b32", sACT, sTO))
    sc.append(salu("s_lshl_b32", sA, sMT, 2))
    sc.append(salu("s_add_u32", sA, sA, sW))
    sc.append(salu("s_cmp_lt_u32", sA, 32))
    sc.append(salu("s_cselect_b32", S(4), S(6), S(4)))
    sc.append(salu("s_cselect_b32", S(5), S(7), S(5)))
    sc.append(salu("s_cselect_b32", sB, 36, 32))
    sc.append(salu("s_cselect_b32", sT, 0, 36 * 9216))
    sc.append(salu("s_add_u32", sTO, sTO, sT))
    sc.append(salu("s_and_b32", sA, sA, 31))
    sc.append(salu("s_mul_i32", sA, sA, sB))
    sc.append(salu("s_mul_i32", sT, sA, 288))
    sc.append(salu("s_add_u32", sTO, sTO, sT))
    srd(sc, SPD.i, 14, 0, sTO)
    sc.append(salu("s_mul_i32", SPD[2], sB, 288))
    sc.append(salu("s_lshl_b32", sT, sB, 5))
    sc.append(salu("s_mul_i32", sT, sT, sQ))
    sc.append(salu("s_add_u32", sA, sA, sT))
    sc.append(salu("s_mul_i32", sA, sA, 1152))
    sc.append(salu("s_mul_i32", sT, sNT, 288))
    sc.append(salu("s_add_u32", sA, sA, sT))
    srd(sc, SPS.i, 4, 0, sA)
    sc.append(salu("s_mul_i32", SPS[2], sB, 1152))
    sc.append(salu("s_sub_u32", SPS[2], SPS[2], 1152 - 288))
    if "l" not in os.environ.get("PK", "ls"): sc.append(salu("s_mov_b32", SPS[2], 0))
    if "s" not in os.environ.get("PK", "ls"): sc.append(salu("s_mov_b32", SPD[2], 0))
    sc.append(salu("s_mov_b32", sPS, 0))
    sc.append(salu("s_mov_b32", sPD, -2 * 864))
    tr.append(salu("s_mov_b32", sA, (2**32 + 17) // 18))
    tr.append(valu("v_mul_hi_u32", RT[0], lane, sA))
    tr.append(valu("v_mul_u32_u24", RT[0], 1152 - 288, RT[0]))
    tr.append(valu("v_add_u32", vPS, vL16, RT[0]))
    tr.append(valu("v_cmp_gt_u32", "vcc", 54, lane))
    tr.append(valu("v_mov_b32", RT[1], 0x40000000))
    tr.append(valu("v_cndmask_b32", vPS, RT[1], vPS, "vcc"))
    tr.append(valu("v_cndmask_b32", vPD, RT[1], vL16, "vcc"))
    for i in range(4): tr.append(valu("v_mov_b32", ONES[i], 0x3f803f80))
    for i in range(4): tr.append(valu("v_mov_b32", LS[i], 0))
    tr.append(waitlgkm(0))
    for i, m_ in enumerate(q0[16:]):
        tr.append(m_)
        tr += sc[3 * i:3 * i + 3]
    tr += sc[48:]
    rm = [rowmax(0, qb, RT[2 * qb], RT[2 * qb + 1]) for qb in range(4)]
    for i in range(len(rm[0])):
        for qb in range(4): tr.append(rm[qb][i])
    for qb in range(4):
        for i in range(4): tr.append(valu("v_sub_f32", NEGM[4 * qb + i], 0, RT[2 * qb]))
    for kb in range(2):
        for qb in range(4):
            s = stile(0, kb, qb)
            for i in range(4): tr.append(valu("v_sub_f32", s[i], s[i], RT[2 * qb]).tag(prod=("S", 0, 3)))
    def pack(b):
        r = PKB[b & 1]
        if os.environ.get("PKX") == "0": return []
        if os.environ.get("PKX") == "l": return [bload(r, vPS, SPS, sPS, 0), salu("s_add_u32", sPS, sPS, 3 * 1152)]
        if os.environ.get("PKX") == "s": return [salu("s_max_i32", sT, sPD, 0), bstore(r, vPD, SPD, sT, 0, SC1), salu("s_add_u32", sPD, sPD, 864)]
        return [salu("s_max_i32", sT, sPD, 0), bstore(r, vPD, SPD, sT, 0, os.environ.get("PKF", SC1)), salu("s_add_u32", sPD, sPD, 864),
                bload(r, vPS, SPS, sPS, 0), salu("s_add_u32", sPS, sPS, 3 * 1152)]
    tr2 = [waitvm(0), barrier()] + signal(sFH) + kdma(4)

    NU = 64
    PG = 68
    RDA = 12
    SM0 = 24
    CHK = 35
    mf = []; fl = []; pre = []
    rare_info = {}
    NPH = 8
    G0 = NPH * PG
    def put(ins, at, dl=None, ph=False):
        ins.ph = ph
        if at + G0 >= 0: fl.append(ins.when(at + G0, None if dl is None else dl + G0))
    sm_list = {}
    for u in range(-NPH + 1, NU):
        l = softmax(u)
        sm_list[u] = l
        b0 = (u - 1) * PG + SM0
        e = 0
        for ins in l:
            if ins.k == "trans":
                at = b0 + (e * 64) // 32; e += 1
            put(ins, at, u * PG + 22 if u < NU - 1 else None, ph=u < 0)
    for n in range(-NPH, NU - 1):
        base = n * PG
        ph = n < 0
        q = qk(n + 1)
        ml = q[:24] + rs(n) + q[24:] + pv(n)
        for m_ in ml: m_.ph = ph
        mf += ml
        kuse = [base + (4 * f if f < 6 else 4 * f + 4) for f in range(8)]
        for f in range(8):
            for r in kread(n + 1, f): put(r, kuse[f] - RDA, kuse[f] - 5, ph)
        vb = base + 36
        for db in range(8):
            for r in vread(n, db): put(r, vb + 4 * db - RDA, vb + 4 * db - 5, ph)
        ck = [valu("v_max3_f32", CK, PS[0], PS[4], PS[8]).tag(cons=[(PS[0], ("PS", n)), (PS[8], ("PS", n))]),
              valu("v_max_f32", CK, CK, PS[12]).tag(cons=[(PS[12], ("PS", n))]),
              valu("v_cmp_nge_f32", "vcc", sThr, CK)]
        for ins in ck: put(ins, base + 31, base + CHK - 1, ph)
        put(branch_back("s_cbranch_vccnz", f"L_rare{n % 8}", f"L_back{n % 8}"), base + CHK, base + CHK, ph)
        for qb in range(4):
            put(valu("v_add_f32", LS[qb], LS[qb], PS[4 * qb]).tag(cons=[(PS[4 * qb], ("PS", n))]), base + CHK + 2 + 4 * qb, base + PG - 1, ph)
        if n % 2 == 0:
            b = n // 2
            g = base + 1
            pk = pack(b)
            for ins in pk[:3] + vdma(2 * b + 4) + kdma(2 * b + 6) + pk[3:]:
                put(ins, g, base + PG + 50, ph)
                if ins.k != "salu": g += (QUIET + 2 if ins.k == "vst" else 10)
        else:
            put(waitvm(8 + sum(1 for x in pack(0) if x.k in VMEM)), base + 54, base + 54, ph)
            put(barrier(), base + 55, base + 55, ph)
    for f in range(8):
        at = (NU - 1) * PG + 4 * f - RDA
        if at < (NU - 1) * PG:
            for r in kread(NU, f, valid=False): put(r, at)
    bodyB, left = schedule(mf, fl, verbose=True)
    mi = [i for i, x in enumerate(bodyB) if x.k == "mfma"][G0]
    pre = [x for x in bodyB[:mi] if not x.ph]
    bodyB = bodyB[mi:]
    assert not any(x.ph for x in bodyB)
    n = NU - 1
    smrest = [i for i in left if i.k in VALUK]
    SACT, SX, SOUT = SK, SV, SPS
    NAF2 = 12; AF2 = A(0, 4 * NAF2)
    CACC = [A(160, 72), A(48, 72)]
    BFS = [V(32, 32), V(64, 32), V(128, 32), A(120, 32)]
    RA = [V(14, 3), V(17, 3), V(20, 3), V(23, 3)]
    vB = [V(26), V(27)]; vP = [V(28), V(29), V(30), V(31), V(6), V(7)]; vX = [V(8), V(9)]
    FV = [V(251), V(252)]
    sM0, sWO, sAO, sO1K, sHI = sKO, sVO, sKM, sVM, sPS
    sPO, sFT = sPD, sFW
    NST = 17; NSF = 9
    def csetup():
        l = []
        l.append(salu("s_mul_i32", sM0, sW, 9216))
        l.append(salu("s_add_u32", sWO, sACT, sM0))
        l.append(salu("s_lshl_b32", sA, sMT, 2))
        l.append(salu("s_add_u32", sA, sA, sW))
        l.append(salu("s_mul_i32", sB, sA, ACT_TB32))
        l.append(salu("s_add_u32", sB, sB, ACT_OFF))
        srd(l, SACT.i, 14, ACT_TB32, sB)
        l.append(salu("s_mul_i32", sAO, sQ, 36 * 2048))
        l.append(salu("s_add_u32", sAO, sAO, 128 * 2048))
        l.append(salu("s_and_b32", sO1K, sQ, 1))
        l.append(salu("s_lshl_b32", sO1K, sO1K, 10))
        l.append(salu("s_lshr_b32", sHI, sQ, 1))
        l.append(valu("v_add_u32", vB[0], sO1K, vL16))
        l.append(valu("v_xor_b32", vB[1], 1024, vB[0]))
        return l
    def csetup2():
        l = []
        X0, X1 = RT[0], RT[1]
        l.append(valu("v_lshrrev_b32", X0, 2, lane))
        l.append(valu("v_mul_u32_u24", X0, 288, X0))
        l.append(valu("v_and_b32", X1, 3, lane))
        l.append(valu("v_lshl_add_u32", X0, X1, 3, X0))
        l.append(salu("s_lshl_b32", sA, sHI, 7))
        l.append(salu("s_xor_b32", sB, sA, 128))
        l.append(valu("v_add_u32", RA[0][0], sA, X0))
        l.append(valu("v_add_u32", RA[0][1], sB, X0))
        l.append(valu("v_add_u32", RA[0][2], 256, X0))
        for s_ in range(1, 4):
            for k in range(3): l.append(valu("v_add_u32", RA[s_][k], 36864 * s_, RA[0][k]))
        return l
    def dsetup():
        l = []
        l.append(salu("s_lshl_b32", sA, sMT, 2))
        l.append(salu("s_add_u32", sFT, sA, sNT))
        l.append(salu("s_lshl_b32", sPO, sFT, 17))
        l.append(salu("s_lshl_b32", sB, sW, 13))
        l.append(salu("s_add_u32", sPO, sPO, sB))
        l.append(salu("s_add_u32", sPO, sPO, PART_OFF))
        l.append(salu("s_lshl_b32", sFT, sFT, 7))
        l.append(salu("s_add_u32", sFT, sFT, F_F))
        l.append(salu("s_add_u32", sA, sA, sW))
        srd(l, SX.i, 8, 2048 * 1152)
        srd(l, SOUT.i, 10, 2048 * 1152)
        X0 = RT[0]
        l.append(valu("v_and_b32", vX[1], 15, lane))
        l.append(valu("v_mul_u32_u24", vX[1], 1152, vX[1]))
        l.append(valu("v_lshrrev_b32", X0, 4, lane))
        l.append(valu("v_lshl_add_u32", vX[1], X0, 3, vX[1]))
        l.append(salu("s_mul_i32", sA, sA, 32 * 1152))
        l.append(salu("s_mul_i32", sB, sO1K, 18))
        l.append(salu("s_add_u32", sA, sA, sB))
        l.append(salu("s_mul_i32", sB, sNT, 288))
        l.append(salu("s_add_u32", sA, sA, sB))
        l.append(valu("v_add_u32", vX[1], sA, vX[1]))
        l.append(salu("s_lshl_b32", sB, sHI, 7))
        l.append(valu("v_add_u32", vX[0], sB, vX[1]))
        l.append(valu("v_add_u32", vX[1], 256, vX[1]))
        return l
    def wregs(sl): return list(range(sl * 9, sl * 9 + 9))
    def wloads(st):
        l = []
        sl = st % 4
        for n_ in range(9):
            if n_ % 4 == 0:
                l.append(salu("s_add_u32", "m0", sM0, sl * 36864 + n_ * 1024))
                l.append(salu("s_add_u32", S(51), sWO, st * 36864 + n_ * 1024))
            l.append(dma(vL16, SWS, S(51), (n_ % 4) * 1024, [(r, ("W2", st)) for r in wregs(sl)]))
        return l
    def aloads(st):
        l = []
        if st == NSF: l.append(salu("s_lshl_b32", sAO, sQ, 16))
        for n_ in range(8):
            l.append(bload(BFS[st % 4][4 * n_:4 * n_ + 4], vB[n_ & 1], SACT, sAO, ((n_ >> 1) & 1) * 2048, SC1).tag(prod=("B", st, n_)))
            if n_ % 4 == 3: l.append(salu("s_add_u32", sAO, sAO, 4096))
        return l
    def weave(main, extra, every):
        groups = []; cur = []
        for x in extra:
            cur.append(x)
            if x.k in VMEM: groups.append(cur); cur = []
        if cur: groups.append(cur)
        out_ = []
        for i, x in enumerate(main):
            out_.append(x)
            if i % every == every - 1 and groups and x.k not in ("branch",): out_ += groups.pop(0)
        for g_ in groups: out_ += g_
        return out_
    def blob(l, wr=(), rd=()):
        l, _ = fix_hazards(l)
        i = Ins(text(l).strip(), "blob")
        for x in l: i.wr |= x.wr; i.rd |= x.rd
        i.nops = 3
        return i
    slow = []
    def flag_load(dst, sflag, off):
        return Ins(f"buffer_load_dword {dst}, off, {SWS}, {sflag} offset:{off} sc1" if off < 4096 else None, "vld", dst.regs(), sflag.regs())
    def flag_check(src, sflag, off, count):
        k = nlab[0]; nlab[0] += 1
        slow.append([label(f"L_sl{k}"), salu("s_add_u32", sA, sflag, off)] + poll(sA, count) + [branch("s_branch", f"L_sb{k}")])
        bl = blob([salu("s_cmp_lt_u32", sT, count), branch_back("s_cbranch_scc1", f"L_sl{k}", f"L_sb{k}")])
        bl.wr |= sA.regs() | sT.regs() | sTO.regs() | VT.regs()
        return [valu("v_readfirstlane_b32", sT, src), bl]
    def stt(i):
        if not (STAMPS and os.environ.get("STT")): return []
        r = S(st_.base + 2 * (7 + i), 2)
        return [raw(f"s_memtime {r}", "salu", [r], [])]

    t = []
    for db in range(8): t += vread(n, db)
    t += csetup()
    t += [waitboth(0, 0), barrier()]
    a1 = list(smrest) + rs(n) + csetup2()
    a1 += [valu("v_max3_f32", CK, PS[0], PS[4], PS[8]), valu("v_max_f32", CK, CK, PS[12]), valu("v_cmp_nge_f32", "vcc", sThr, CK),
           nop(1), branch_back("s_cbranch_vccnz", "L_rare_last", "L_back_last")]
    for qb in range(4): a1.append(valu("v_add_f32", LS[qb], LS[qb], PS[4 * qb]))
    for qb in range(4): a1.append(valu("v_rcp_f32", LS[qb], LS[qb]))
    mf = pv(n); fl = []
    OT = [V(160, 8), V(168, 8)]
    OH = [V(96 + 4 * i, 4) for i in range(8)] + [V(192 + 4 * i, 4) for i in range(8)]
    ostores = []
    k = 0
    for m in range(4):
        for qb in range(4):
            dst = OT[k % 2]; oh = OH[k]; k += 1
            at = 8 * m + 4 + qb + 3
            for hh in range(2):
                o = otile(2 * m + hh, qb)
                for i in range(4):
                    fl.append(valu("v_accvgpr_read_b32", dst[4 * hh + i], o[i]).when(at))
                    fl.append(valu("v_mul_f32", dst[4 * hh + i], dst[4 * hh + i], LS[qb]).when(at))
                for i in range(2):
                    fl.append(valu("v_cvt_pk_bf16_f32", oh[2 * hh + i], dst[4 * hh + 2 * i], dst[4 * hh + 2 * i + 1]).when(at))
            if qb == 0: ostores.append(salu("s_add_u32", sHO, sOO, m * 2048))
            x = bstore(oh, vL16b if qb >> 1 else vL16, SWS, sHO, (qb & 1) * 1024, SC1); x.prod = "OST"
            ostores.append(x)
    bodyC, left2 = schedule(mf, fl)
    main = a1 + bodyC + left2
    t += weave(main, wloads(0) + aloads(0) + wloads(1) + aloads(1) + wloads(2) + aloads(2), int(os.environ.get("TW", "8")))
    t += stt(0)
    t += [waitdma(lambda c: c == ("W2", 0)), barrier()]
    tail = t

    NMERGE = 2
    seq = [(st, ks, nt) for st in range(NST - NMERGE) for ks in range(4) for nt in range(9)]
    for nt in (4, 5, 6, 7, 8, 0, 1, 2, 3):
        for st in range(NST - NMERGE, NST):
            for ks in range(4): seq.append((st, ks, nt))
    def ctile(st, nt, tb): return CACC[st >= NSF][(nt * 2 + tb) * 4:(nt * 2 + tb) * 4 + 4]
    BARG = 2 * 29
    mf = []; fl = []; preC = []
    bgap = {}
    for st in range(1, NST - NMERGE + 1):
        bg = st * 72 - 72 + BARG
        bgap[st] = bg
        lim = NST if st == NST - NMERGE else st
        fl.append(waitdma(lambda c, lim=lim: c[0] == "W2" and c[1] <= lim).when(bg - 2, bg - 1))
        fl.append(waitlgkm(0).when(bg - 1, bg)); fl.append(barrier().when(bg, bg + 1))
    for gi, (st, ks, nt) in enumerate(seq):
        use = 2 * gi
        a = AF2[4 * (gi % NAF2):4 * (gi % NAF2) + 4]
        f = gi % 36
        s0 = gi // 36
        at = use - 2 * (NAF2 - 1)
        if s0 in bgap and f < 12: at = max(at, bgap[s0] + 1 + f)
        ra = RA[st % 4][nt // 4]
        off = ks * 9216 + (nt % 4) * 32
        m_ = (wregs(st % 4)[0], ("W2", st))
        rr = [dsr("ds_read_b64_tr_b16", a[0:2], ra, off, m_).tag(prod=("A", gi)),
              dsr("ds_read_b64_tr_b16", a[2:4], ra, off + 16 * 288, m_).tag(prod=("A", gi))]
        if at < 0: preC += rr
        else:
            for r in rr: fl.append(r.when(at, use - 4))
        for tb in range(2):
            bi = ks * 2 + tb
            b = BFS[st % 4][4 * bi:4 * bi + 4]
            c = ctile(st, nt, tb)
            first = ks == 0 and st in (0, NSF)
            mf.append(mfma(c, a, b, 0 if first else c).tag(prod=("C", st, ks), cons=[(a, ("A", gi)), (b, ("B", st, bi))]))
    GC = len(mf)
    def place2(l, g, step, dl=None):
        for ins in l:
            fl.append(ins.when(g, dl))
            if ins.k in VMEM: g += step
    for st in range(NST - 3):
        base = st * 72
        place2(wloads(st + 3), base + 1, 7, base + 71)
        al = aloads(st + 3)
        if st + 3 == NSF: al = flag_check(FV[0], sFI, 32 * 128, 8) + al
        place2(al, base + 5, 8, base + 71)
    place2(ostores, 3, int(os.environ.get("OSTEP", "7")))
    class WaitTag:
        pass
    def wait_prod(tag):
        i = Ins("waitprod", "wait"); i.meta = tag; return i
    def sig_at(st, tag, sflag, off):
        bg = bgap[st]
        fl.append(wait_prod(tag).when(bg - 3, bg - 1))
        fl.append(blob([salu("s_add_u32", sA, sflag, off)] + signal(sA)).when(bg + 2, bg + 6))
    sig_at(int(os.environ.get("OSIG", "3")), "OST", sFH, 32 * 128)
    OFL = int(os.environ.get("OFL", str(5 * 72 + 4)))
    fl.append(blob([salu("s_add_u32", sA, sFI, 32 * 128)]).when(OFL))
    fl.append(flag_load(FV[0], sA, 0).when(OFL + 1, OFL + 20))
    place2(dsetup(), 7 * 72, 1)
    PW = 64 * 4 * 4 * 8192
    own = [0, 1, 2, 3, 8]
    PAIRS = [((4, 0), (5, 0), 2048), ((4, 1), (5, 1), 4096), ((6, 0), (7, 0), 3072), ((6, 1), (7, 1), 5120), ((8, 0), (8, 1), 6144),
             ((0, 1), (1, 1), 0), ((2, 1), (3, 1), 1024)]
    PT = [V(96, 8), V(104, 8)]; PO_ = [V(112 + 4 * i, 4) for i in range(4)]
    def pstores(which, gaps, vgaps=None, PO_=PO_):
        cst = NSF - 1 if which == 0 else NST - 1
        so = [S(12), S(13)]
        fl.append(salu("s_lshl_b32", so[0], sQ, 15).when(gaps[0] - 5))
        fl.append(salu("s_add_u32", so[0], so[0], sPO).when(gaps[0] - 4))
        if which: fl.append(salu("s_add_u32", so[0], so[0], PW).when(gaps[0] - 3))
        fl.append(salu("s_add_u32", so[1], so[0], 4096).when(gaps[0] - 2))
        for k, ((t0, t1, off), g) in enumerate(zip(PAIRS, gaps)):
            tmp = PT[k % 2]; po = PO_[k % len(PO_)]
            gs = g
            if vgaps: g = vgaps[k]
            for h_, (nt, tb) in enumerate((t0, t1)):
                c = ctile(cst, nt, tb)
                for i in range(4):
                    fl.append(valu("v_accvgpr_read_b32", tmp[4 * h_ + i], c[i]).tag(cons=[(c[i], ("C", cst, 3))]).when(g))
                for i in range(2):
                    fl.append(valu("v_cvt_pk_bf16_f32", po[2 * h_ + i], tmp[4 * h_ + 2 * i], tmp[4 * h_ + 2 * i + 1]).when(g))
            fl.append(bstore(po, vL16, SWS, so[off >> 12], off & 4095, SC1).tag(prod=("PST", which)).when(gs))
    def ploads(dst, which):
        l = []
        for d in (1, 2, 3):
            l.append(salu("s_xor_b32", sB, sQ, d))
            l.append(salu("s_lshl_b32", sB, sB, 15))
            l.append(salu("s_add_u32", sB, sB, sPO))
            l.append(salu("s_add_u32", sA, sB, which * PW + 6144))
            l.append(salu("s_add_u32", sB, sB, which * PW + (d - 1) * 2048))
            r = dst[(d - 1) * 10:(d - 1) * 10 + 10]
            l.append(bload(r[0:4], vL16, SWS, sB, 0, SC1))
            l.append(bload(r[4:8], vL16, SWS, sB, 1024, SC1))
            l.append(bload(r[8:10], vL16, SWS, sA, 8 * (d & 1), SC1))
        return l
    FST = int(os.environ.get("FST", "14"))
    pstores(0, [FST * 72 + 2 + 8 * i for i in range(7)], [NSF * 72 + 6 + 30 * i for i in range(7)], [V(160 + 4 * i, 4) for i in range(7)])
    XR = V(220, 10); GE = V(32, 20); XF = V(140, 20); SO = V(52, 20)
    xl = [bload(XR[2 * k:2 * k + 2], vX[nt // 8], SX, 0, (nt % 4) * 32) for k, nt in enumerate(own)]
    place2(xl, 13 * 72 + 66, 3)
    m0g = (NST - NMERGE) * 72
    grp = 8 * NMERGE
    pstores(1, [m0g + grp * i + 4 for i in (2, 2, 4, 4, 5, 7, 9)])
    fg = m0g + int(os.environ.get("FSIG", "30"))
    fl.append(wait_prod(("PST", 0)).when(fg, fg + 2)); fl.append(barrier().when(fg + 1, fg + 3))
    fl.append(blob(signal(sFT)).when(fg + 3, fg + 8))
    if STAMPS and os.environ.get("STC"):
        for i, st in enumerate((0, 1, 2, 3, 4, 6, 7, 9, 11, 13, 15)):
            r = S(st_.base + 2 * (2 + i), 2)
            fl.append(raw(f"s_memtime {r}", "salu", [r], []).when(st * 72))
    bodyD, left3 = schedule(mf, fl, verbose=True)
    fin = list(left3)
    if STAMPS and os.environ.get("STC"): fin.append(raw(f"s_memtime {S(st_.base + 2 * 13, 2)}", "salu"))
    fin += stt(1)
    fin.append(flag_load(FV[1], sFT, 0))
    for k, nt in enumerate(own):
        for i in range(4):
            fin.append(valu("v_accvgpr_read_b32", GE[k * 4 + i], ctile(NSF - 1, nt, 0)[i]))
            fin.append(valu("v_accvgpr_read_b32", SO[k * 4 + i], ctile(NST - 1, nt, 0)[i]))
            xs = XR[2 * k + i // 2]
            fin.append(valu("v_lshlrev_b32", XF[k * 4 + i], 16, xs) if i % 2 == 0 else valu("v_and_b32", XF[k * 4 + i], 0xffff0000, xs))
    fin += [waitvm(0), barrier(), salu("s_add_u32", S(12), sFT, 64 * 128)] + signal(S(12))
    fin += stt(2)
    PLF = V(160, 30); PLS = V(190, 30); UT = V(72, 8)
    fin += flag_check(FV[1], sFT, 0, 4) + ploads(PLF, 0)
    fin.append(flag_load(FV[0], S(12), 0))
    def accum(dst, src):
        l = []
        u = 0
        for d in range(3):
            for r in range(10):
                for h_ in range(2):
                    t_ = UT[u % 8]; u += 1
                    l.append(valu("v_lshlrev_b32", t_, 16, src[d * 10 + r]) if h_ == 0 else valu("v_and_b32", t_, 0xffff0000, src[d * 10 + r]))
                    l.append(valu("v_add_f32", dst[2 * r + h_], dst[2 * r + h_], t_))
        return l
    fin += accum(GE, PLF)
    E2 = V(80, 20)
    for k in range(20): fin.append(valu("v_mul_f32", E2[k], -LOG2E, GE[k]))
    for k in range(20): fin.append(valu("v_exp_f32", E2[k], E2[k]))
    fin += stt(3)
    fin += flag_check(FV[0], S(12), 0, 4)
    fin += stt(4)
    fin += ploads(PLS, 1)
    for k in range(20): fin.append(valu("v_add_f32", E2[k], 1.0, E2[k]))
    for k in range(20): fin.append(valu("v_rcp_f32", E2[k], E2[k]))
    for k in range(20): fin.append(valu("v_mul_f32", GE[k], GE[k], E2[k]))
    fin += accum(SO, PLS)
    for k, nt in enumerate(own):
        for i in range(4): fin.append(valu("v_fmac_f32", XF[k * 4 + i], SO[k * 4 + i], GE[k * 4 + i]))
        for i in range(2):
            fin.append(valu("v_cvt_pk_bf16_f32", XR[2 * k + i], XF[k * 4 + 2 * i], XF[k * 4 + 2 * i + 1]))
        fin.append(bstore(XR[2 * k:2 * k + 2], vX[nt // 8], SOUT, 0, (nt % 4) * 32))

    full = progA + tr + pre + tr2 + [label("@LOOP")] + bodyB + [label("@TAIL")] + tail + preC + bodyD + fin
    full = insert_waits(full)
    rep = []
    full, nfix = fix_hazards(full, rep)
    assert check_lds(full) == 0
    assert check_tags(full) == 0
    ix = {x.t: i for i, x in enumerate(full) if x.k == "label" and x.t.startswith("@")}
    head, loop, tail = full[:ix["@LOOP:"]], full[ix["@LOOP:"] + 1:ix["@TAIL:"]], full[ix["@TAIL:"] + 1:]
    print("K1 nops fixed:", len(rep))
    import difflib
    def same(a_, b_, allow_extra_wait):
        if text(a_) == text(b_): return True
        df = [l for l in difflib.unified_diff(text(a_).split("\n"), text(b_).split("\n"), lineterm="", n=0) if l[0] in "+-" and l[:3] not in ("---", "+++")]
        if allow_extra_wait and all(l.startswith("- s_waitcnt") for l in df): return True
        print("\n".join(df[:30]))
        return False
    idx = [i for i, ins in enumerate(loop) if ins.k == "mfma"]
    head += loop[:idx[0]]
    cuts = [idx[PG * s] for s in range(NU - 1)] + [len(loop)]
    per = [loop[cuts[s]:cuts[s + 1]] for s in range(NU - 1)]
    for s in range(8, NU - 1):
        assert same(per[s - 8], per[s], s == NU - 2), f"period {s} not periodic"
    print("K1 est cycles: head", est_cycles(head), "periods", [est_cycles(per[s]) for s in range(8)], "tail+C+D", est_cycles(tail))

    out = head
    out += st_()
    out.append(salu("s_mov_b32", sCnt, 8))
    out.append(branch("s_branch", "L_k1_enter"))
    out.append(label("L_side"))
    if CPF:
        out.append(salu("s_cmp_lg_u32", sCnt, 1))
        out.append(branch("s_cbranch_scc1", "L_side1"))
        out += fix_hazards(code_pf("L_k1_tail", 32 * 1024, V(244, 3), S(62, 2)))[0]
        out.append(label("L_side1"))
    out.append(salu("s_cmp_lg_u32", sW, 0))
    out.append(branch("s_cbranch_scc1", "L_k1_loop"))
    out.append(salu("s_cmp_eq_u32", sCnt, 4))
    out.append(branch("s_cbranch_scc0", "L_side2"))
    out += signal(sFW)[2:-1]
    out.append(branch("s_branch", "L_k1_loop"))
    out.append(label("L_side2"))
    out.append(salu("s_cmp_eq_u32", sCnt, 3))
    out.append(branch("s_cbranch_scc1", "L_k1_loop"))
    out.append(salu("s_cmp_eq_u32", sCnt, 2))
    out.append(branch("s_cbranch_scc0", "L_side3"))
    out.append(flag_load(FV[0], sFI, 0)); out.append(flag_load(FV[1], sFW, 0))
    out.append(branch("s_branch", "L_k1_loop"))
    out.append(label("L_side3"))
    x = flag_check(FV[0], sFI, 0, 8); out += [x[0], nop(0), x[1]]
    x = flag_check(FV[1], sFW, 0, 16); out += [x[0], nop(0), x[1]]
    if not os.environ.get("NOINV"): out.append(raw("buffer_inv sc1", "salu"))
    la = os.environ.get("LA", "")
    if la:
        out.append(raw(".p2align 6, , 60" if False else ".p2align 6", "salu"))
        if la == "4": out.append(nop(0))
    out.append(label("L_k1_loop"))
    out += per[7]
    out.append(label("L_k1_enter"))
    for s in range(7): out += per[s]
    out.append(salu("s_sub_u32", sCnt, sCnt, 1))
    if STAMPS and os.environ.get("STL"):
        for c in range(7, 0, -1):
            out.append(salu("s_cmp_lg_u32", sCnt, c))
            out.append(branch("s_cbranch_scc1", f"L_stl{c}"))
            out += st_()
            out.append(label(f"L_stl{c}"))
    out.append(salu("s_cmp_gt_u32", sCnt, 4))
    out.append(branch("s_cbranch_scc1", "L_k1_loop"))
    out.append(salu("s_cmp_lg_u32", sCnt, 0))
    out.append(branch("s_cbranch_scc1", "L_side"))
    out += st_()
    if os.environ.get("STT"): st_.n += 5
    if os.environ.get("STC"): st_.n = 14
    out.append(label("L_k1_tail"))
    out += tail
    if STAMPS: out.append(raw("s_waitcnt vmcnt(0)", "salu"))
    out += st_() + st_(True) + st_.dump(14)
    out.append(label("L_k1_end"))
    out.append(raw("s_endpgm"))
    for l in slow:
        l, _ = fix_hazards(l)
        out += l
    def rare_body(n, has_next):
        l = [nop(7)]
        D, Fc, TM = RT[0:4], RT[4:8], CK
        for qb in range(4):
            l += rowmax(n, qb, D[qb], TM)
            l.append(valu("v_max_f32", D[qb], 0, D[qb]))
            l.append(valu("v_exp_f32", Fc[qb], Neg(D[qb])))
            for i in range(4): l.append(valu("v_sub_f32", NEGM[4 * qb + i], NEGM[4 * qb + i], D[qb]))
            l.append(valu("v_mul_f32", LS[qb], LS[qb], Fc[qb]))
            for u in ((n, n + 1) if has_next else (n,)):
                for kb in range(2):
                    s = stile(u, kb, qb)
                    for i in range(4): l.append(valu("v_sub_f32", s[i], s[i], D[qb]))
            for db in range(8):
                o = otile(db, qb)
                for i in range(4):
                    l.append(valu("v_accvgpr_read_b32", TM, o[i]))
                    l.append(valu("v_mul_f32", TM, TM, Fc[qb]))
                    l.append(valu("v_accvgpr_write_b32", o[i], TM))
        l += softmax(n)
        l += rs(n)
        if has_next:
            done = []
            for ins in per[n]:
                if ins.k == "branch": break
                if any(ins is x for x in sm_list[n + 1]): done.append(ins)
            l += done
        l.append(nop(7))
        l, _ = fix_hazards(l)
        return l
    for r in range(8):
        out.append(label(f"L_rare{r}"))
        out.append(raw(f"s_call_b64 {sRet}, L_rsub{r & 1}", "branch"))
        out.append(branch("s_branch", f"L_back{r}"))
    for r in range(8, 16):
        assert text(rare_body(r, True)) == text(rare_body(8 + (r & 1), True))
    for par in range(2):
        out.append(label(f"L_rsub{par}"))
        out += rare_body(8 + par, True)
        out.append(raw(f"s_setpc_b64 {sRet}", "branch"))
    out.append(label("L_rare_last"))
    out += rare_body(NU - 1, False)
    out.append(branch("s_branch", "L_back_last"))
    return kernel_text("attn_kernel", out, 512, 256, 102 if STAMPS else 70)
```

```python
from fw import *

XN_OFF = 0
XN_SIZE = 32 * 73728
ACT_OFF = 0x400000
ACT_TB32 = 272 * 2048
ACT_SIZE = 64 * ACT_TB32
PART_OFF = ACT_OFF + ACT_SIZE
PART_SP = 128 * 36 * 1024
WPK_OFF = PART_OFF + 8 * PART_SP
WPK_G = 68 * 9216
WS_USED = WPK_OFF + 16 * WPK_G
LOG2E = 1.4426950408889634
FLAG_OFF = 0x300000

def srd(p, d, ptr, nrec, add=None):
    if add is None:
        p.append(salu("s_mov_b32", S(d), S(ptr)))
        p.append(salu("s_mov_b32", S(d + 1), S(ptr + 1)))
    else:
        p.append(salu("s_add_u32", S(d), S(ptr), add))
        p.append(salu("s_addc_u32", S(d + 1), S(ptr + 1), 0))
    p.append(salu("s_mov_b32", S(d + 2), nrec))
    p.append(salu("s_mov_b32", S(d + 3), 0x20000))

def sload(p, d, off):
    p.append(raw(f"s_load_dwordx2 {S(d,2)}, s[0:1], {off}", "salu", [S(d, 2)], []))

import os
STAMPS = os.environ.get("STAMPS", "0") == "1"
STAMP_OFF = 0x8000000
class Stamper:
    def __init__(self, kidx, base=64):
        self.n = 0; self.k = kidx; self.base = base
    def __call__(self, real=False):
        if not STAMPS: return []
        r = S(self.base + 2 * self.n, 2); self.n += 1
        return [raw(f"s_mem{'real' if real else ''}time {r}", "salu", [r], [])]
    def dump(self, ws_ptr, vt=250, lw=2):
        if not STAMPS: return []
        p = [raw("s_waitcnt vmcnt(0) lgkmcnt(0)", "salu")]
        srd(p, 96, ws_ptr, 0x400000, STAMP_OFF + self.k * 0x40000)
        p.append(salu("s_mov_b32", S(98), 0x40000))
        p.append(valu("v_lshrrev_b32", V(vt), 6, V(0)))
        p.append(raw(f"s_lshl_b32 s100, s2, {lw}", "salu"))
        p.append(raw(f"v_add_u32 v{vt}, s100, v{vt}", "valu"))
        p.append(raw(f"v_lshlrev_b32 v{vt}, 8, v{vt}", "valu"))
        for i in range(self.n):
            p.append(raw(f"v_mov_b32 v{vt+2}, s{self.base + 2 * i}", "valu"))
            p.append(raw(f"v_mov_b32 v{vt+3}, s{self.base + 2 * i + 1}", "valu"))
            p.append(raw(f"buffer_store_dwordx2 v[{vt+2}:{vt+3}], v{vt}, s[96:99], 0 offen offset:{8 * i}", "salu"))
            p.append(nop(1))
        return p

def finish(p):
    p = insert_waits(p)
    rep = []
    p, n = fix_hazards(p, rep)
    return p


def kernel_text(name, prog, vgpr, accum, sgpr=102):
    body = text(prog)
    am = os.environ.get("ALIGN", "")
    if am:
        from align import align
        body = "\n".join(align(body.split("\n"), am))
    t = f""".globl {name}
.p2align 8
.type {name},@function
{name}:
{body}
"""
    d = f""".p2align 6
.amdhsa_kernel {name}
  .amdhsa_next_free_vgpr {vgpr}
  .amdhsa_next_free_sgpr {sgpr}
  .amdhsa_accum_offset {accum}
  .amdhsa_group_segment_fixed_size 0
  .amdhsa_kernarg_size 96
  .amdhsa_user_sgpr_count 2
  .amdhsa_user_sgpr_kernarg_segment_ptr 1
  .amdhsa_system_sgpr_workgroup_id_x 1
.end_amdhsa_kernel
"""
    return t, d


K0PF = os.environ.get("K0PF", "1") == "1"
K0_GRID = 256
def gen_k0():
    p = []
    p.append(salu("s_cmp_ge_u32", S(2), K0_GRID))
    p.append(branch("s_cbranch_scc1", "L_k0_end"))
    st_ = Stamper(0)
    p += st_(True) + st_()
    sload(p, 4, 0); sload(p, 6, 88); sload(p, 28, 48); sload(p, 30, 56)
    p.append(valu("v_lshrrev_b32", V(1), 4, V(0)))
    p.append(salu("s_lshl_b32", S(3), S(2), 3))
    p.append(valu("v_add_u32", V(1), S(3), V(1)))
    p.append(valu("v_and_b32", V(2), 15, V(0)))
    p.append(valu("v_mul_u32_u24", V(3), 1152, V(1)))
    p.append(valu("v_lshl_add_u32", V(3), V(2), 3, V(3)))
    p.append(raw("s_waitcnt lgkmcnt(0)", "salu"))
    srd(p, 8, 4, 2048 * 1152)
    srd(p, 12, 6, FLAG_OFF + 256 * 128)
    X = V(8, 18)
    for m in range(9):
        p.append(bload(X[2 * m:2 * m + 2], V(3), S(8, 4), 0, m * 128))
    p.append(valu("v_and_b32", V(6), 31, V(0)))
    p.append(valu("v_lshlrev_b32", V(6), 2, V(6)))
    p.append(valu("v_mov_b32", V(7), 0))
    p.append(salu("s_lshl_b32", S(17), S(2), 7))
    p.append(salu("s_add_u32", S(17), S(17), FLAG_OFF))
    p.append(bstore(V(7), V(6), S(12, 4), S(17), 0))
    if K0PF:
        p.append(valu("v_lshrrev_b32", V(74), 6, V(0)))
        p.append(valu("v_and_b32", V(75), 63, V(0)))
        p.append(valu("v_readfirstlane_b32", S(18), V(74)))
        p.append(salu("s_cmp_eq_u32", S(18), 1))
        p.append(salu("s_cselect_b32", S(28), S(30), S(28)))
        p.append(salu("s_cselect_b32", S(29), S(31), S(29)))
        srd(p, 24, 28, 576 * 9216)
        p.append(salu("s_and_b32", S(18), S(2), 7))
        p.append(salu("s_mul_i32", S(18), S(18), 1152))
        p.append(salu("s_lshr_b32", S(19), S(2), 3))
        p.append(salu("s_mul_i32", S(19), S(19), 18 * 9216))
        p.append(salu("s_add_u32", S(18), S(18), S(19)))
        p.append(salu("s_mov_b32", S(19), (2**32 + 8) // 9))
        for i in range(3):
            p.append(valu("v_min_u32", V(76), 53, V(75)))
            p.append(valu("v_add_u32", V(76), 54 * i, V(76)))
            p.append(valu("v_mul_hi_u32", V(77), V(76), S(19)))
            p.append(valu("v_mul_u32_u24", V(78), 9, V(77)))
            p.append(valu("v_sub_u32", V(76), V(76), V(78)))
            p.append(valu("v_mul_u32_u24", V(77), 9216, V(77)))
            p.append(valu("v_lshl_add_u32", V(76), V(76), 7, V(77)))
            p.append(bload(V(80 + i), V(76), S(24, 4), S(18), 0))
    p.append(valu("v_lshrrev_b32", V(4), 6, V(1)))
    p.append(valu("v_mul_u32_u24", V(4), 73728, V(4)))
    p.append(valu("v_lshrrev_b32", V(5), 3, V(2)))
    p.append(valu("v_lshl_add_u32", V(4), V(5), 12, V(4)))
    p.append(valu("v_bfe_u32", V(5), V(1), 4, 2))
    p.append(valu("v_lshl_add_u32", V(4), V(5), 10, V(4)))
    p.append(valu("v_bfe_u32", V(5), V(2), 1, 2))
    p.append(valu("v_lshl_add_u32", V(4), V(5), 8, V(4)))
    p.append(valu("v_and_b32", V(5), 15, V(1)))
    p.append(valu("v_lshl_add_u32", V(4), V(5), 4, V(4)))
    p.append(valu("v_and_b32", V(5), 1, V(2)))
    p.append(valu("v_lshl_add_u32", V(4), V(5), 3, V(4)))
    F = V(28, 36)
    for i in range(18):
        p.append(valu("v_lshlrev_b32", F[2 * i], 16, X[i]))
        p.append(valu("v_and_b32", F[2 * i + 1], 0xffff0000, X[i]))
    def reduce16(r):
        for mod in ("quad_perm:[1,0,3,2] row_mask:0xf bank_mask:0xf", "quad_perm:[2,3,0,1] row_mask:0xf bank_mask:0xf",
                    "row_half_mirror row_mask:0xf bank_mask:0xf", "row_mirror row_mask:0xf bank_mask:0xf"):
            p.append(valu("v_add_f32_dpp", r, r, r, mod=mod))
    acc = [V(64), V(65), V(66), V(67)]
    for i in range(4): p.append(valu("v_add_f32", acc[i], F[i], F[i + 4]))
    for i in range(8, 36): p.append(valu("v_add_f32", acc[i % 4], acc[i % 4], F[i]))
    p.append(valu("v_add_f32", acc[0], acc[0], acc[1]))
    p.append(valu("v_add_f32", acc[2], acc[2], acc[3]))
    p.append(valu("v_add_f32", acc[0], acc[0], acc[2]))
    reduce16(acc[0])
    mean = V(68)
    p.append(valu("v_mul_f32", mean, 1.0 / 576, acc[0]))
    T = [V(70), V(71), V(72), V(73)]
    for i in range(36):
        p.append(valu("v_sub_f32", T[i % 4], F[i], mean))
        if i < 4: p.append(valu("v_mul_f32", acc[i], T[i], T[i]))
        else: p.append(valu("v_fmac_f32", acc[i % 4], T[i % 4], T[i % 4]))
    p.append(valu("v_add_f32", acc[0], acc[0], acc[1]))
    p.append(valu("v_add_f32", acc[2], acc[2], acc[3]))
    p.append(valu("v_add_f32", acc[0], acc[0], acc[2]))
    reduce16(acc[0])
    var = V(69)
    p.append(valu("v_mul_f32", var, 1.0 / 576, acc[0]))
    def rbf(r):
        p.append(valu("v_cvt_pk_bf16_f32", r, r, r))
        p.append(valu("v_lshlrev_b32", r, 16, r))
    rbf(mean); rbf(var)
    p.append(valu("v_add_f32", var, 1e-5, var)); rbf(var)
    p.append(valu("v_sqrt_f32", var, var)); rbf(var)
    p.append(valu("v_rcp_f32", var, var))
    for i in range(18):
        a, b = F[2 * i], F[2 * i + 1]
        p.append(valu("v_sub_f32", a, a, mean))
        p.append(valu("v_sub_f32", b, b, mean))
        p.append(valu("v_cvt_pk_bf16_f32", X[i], a, b))
        p.append(valu("v_lshlrev_b32", a, 16, X[i]))
        p.append(valu("v_and_b32", b, 0xffff0000, X[i]))
        p.append(valu("v_mul_f32", a, a, var))
        p.append(valu("v_mul_f32", b, b, var))
        p.append(valu("v_cvt_pk_bf16_f32", X[i], a, b))
        if i % 2 == 1:
            m = i // 2
            p.append(salu("s_mov_b32", S(16), m * 8192))
            p.append(bstore(X[2 * m:2 * m + 2], V(4), S(12, 4), S(16), 0))
    if STAMPS: p.append(raw("s_waitcnt vmcnt(0)", "salu"))
    p += st_() + st_(True) + st_.dump(6, 74, 1)
    p.append(label("L_k0_end"))
    p.append(raw("s_endpgm"))
    return kernel_text("ln_kernel", finish(p), 88, 88, 102 if STAMPS else 32)


K3_GRID = 576
def gen_k3():
    p = []
    p.append(salu("s_cmp_ge_u32", S(2), K3_GRID))
    p.append(branch("s_cbranch_scc1", "L_k3_end"))
    st_ = Stamper(3)
    p += st_(True) + st_()
    sload(p, 4, 0); sload(p, 6, 88); sload(p, 20, 72)
    p.append(valu("v_lshrrev_b32", V(1), 6, V(0)))
    p.append(valu("v_and_b32", V(2), 63, V(0)))
    p.append(valu("v_readfirstlane_b32", S(3), V(1)))
    p.append(salu("s_lshl_b32", S(22), S(2), 2))
    p.append(salu("s_add_u32", S(22), S(22), S(3)))
    p.append(salu("s_mul_hi_u32", S(23), S(22), (2**32 + 17) // 18))
    p.append(salu("s_mul_i32", S(24), S(23), 18))
    p.append(salu("s_sub_u32", S(24), S(22), S(24)))
    p.append(salu("s_lshl_b32", S(25), S(22), 11))
    p.append(valu("v_lshlrev_b32", V(3), 4, V(2)))
    p.append(valu("v_and_b32", V(4), 15, V(2)))
    p.append(valu("v_mul_u32_u24", V(4), 1152, V(4)))
    p.append(valu("v_lshrrev_b32", V(5), 4, V(2)))
    p.append(valu("v_lshl_add_u32", V(4), V(5), 3, V(4)))
    p.append(salu("s_mul_i32", S(26), S(23), 16 * 1152))
    p.append(salu("s_lshl_b32", S(27), S(24), 6))
    p.append(salu("s_add_u32", S(26), S(26), S(27)))
    p.append(raw("s_waitcnt lgkmcnt(0)", "salu"))
    srd(p, 8, 4, 2048 * 1152)
    srd(p, 12, 6, 4 * PART_SP, PART_OFF)
    srd(p, 16, 20, 2048 * 1152)
    P = V(8, 32); X = V(40, 4)
    for sp in range(4):
        if sp: p.append(salu("s_add_u32", S(25), S(25), PART_SP))
        for t in range(2):
            p.append(bload(P[(sp * 2 + t) * 4:(sp * 2 + t) * 4 + 4], V(3), S(12, 4), S(25), t * 1024))
    for t in range(2):
        p.append(bload(X[2 * t:2 * t + 2], V(4), S(8, 4), S(26), t * 32))
    E = V(44, 8); XF = V(52, 8)
    for t in range(2):
        for i in range(4):
            s0, s1, f0, f1 = (P[(sp * 2 + t) * 4 + i] for sp in range(4))
            e = E[t * 4 + i]
            p.append(valu("v_add_f32", s0, s0, s1))
            p.append(valu("v_add_f32", f0, f0, f1))
            p.append(valu("v_mul_f32", e, -LOG2E, f0))
            p.append(valu("v_exp_f32", e, e))
            p.append(valu("v_mul_f32", s0, s0, f0))
            p.append(valu("v_add_f32", e, 1.0, e))
            p.append(valu("v_rcp_f32", e, e))
            xf = XF[t * 4 + i]
            if i % 2 == 0: p.append(valu("v_lshlrev_b32", xf, 16, X[2 * t + i // 2]))
            else: p.append(valu("v_and_b32", xf, 0xffff0000, X[2 * t + i // 2]))
            p.append(valu("v_fmac_f32", xf, s0, e))
        p.append(valu("v_cvt_pk_bf16_f32", X[2 * t], XF[t * 4], XF[t * 4 + 1]))
        p.append(valu("v_cvt_pk_bf16_f32", X[2 * t + 1], XF[t * 4 + 2], XF[t * 4 + 3]))
        p.append(bstore(X[2 * t:2 * t + 2], V(4), S(16, 4), S(26), t * 32))
    if STAMPS: p.append(raw("s_waitcnt vmcnt(0)", "salu"))
    p += st_() + st_(True) + st_.dump(6, 60, 0)
    p.append(label("L_k3_end"))
    p.append(raw("s_endpgm"))
    return kernel_text("fin_kernel", finish(p), 64, 64, 102 if STAMPS else 32)


K2_LDS = 4 * 36864
def gen_k2():
    p = []
    p.append(salu("s_cmp_ge_u32", S(2), 256))
    p.append(branch("s_cbranch_scc1", "L_k2_end"))
    st_ = Stamper(2)
    p += st_(True) + st_()
    sload(p, 4, 32); sload(p, 6, 64); sload(p, 20, 88)
    lane, wv = V(1), V(2)
    p.append(valu("v_and_b32", lane, 63, V(0)))
    p.append(valu("v_lshrrev_b32", wv, 6, V(0)))
    sW, sSP, sMT, sNT, sNKS, sT0, sT1 = S(3), S(22), S(23), S(24), S(25), S(26), S(27)
    p.append(valu("v_readfirstlane_b32", sW, wv))
    p.append(salu("s_and_b32", sSP, S(2), 3))
    p.append(salu("s_bfe_u32", sMT, S(2), (1 << 16) | 2))
    p.append(salu("s_lshl_b32", sMT, sMT, 3))
    p.append(salu("s_lshr_b32", sT0, S(2), 5))
    p.append(salu("s_add_u32", sMT, sMT, sT0))
    p.append(salu("s_bfe_u32", sNT, S(2), (2 << 16) | 3))
    p.append(salu("s_cmp_ge_u32", sSP, 2))
    p.append(salu("s_cselect_b32", sNKS, 72, 64))
    p.append(raw("s_waitcnt lgkmcnt(0)", "salu"))
    p.append(salu("s_cselect_b32", S(4), S(6), S(4)))
    p.append(salu("s_cselect_b32", S(5), S(7), S(5)))
    p.append(salu("s_cselect_b32", sT1, 128, 0))
    p.append(salu("s_and_b32", sT0, sSP, 1))
    p.append(salu("s_mul_i32", sT0, sT0, sNKS))
    p.append(salu("s_add_u32", sT1, sT1, sT0))
    sA, sB = S(28), S(29)
    p.append(salu("s_mul_i32", sA, sT0, 32 * 1152))
    p.append(salu("s_mul_i32", sB, sNT, 288))
    p.append(salu("s_add_u32", sA, sA, sB))
    srd(p, 8, 4, 0, sA)
    p.append(salu("s_mul_i32", S(10), sNKS, 32 * 1152))
    p.append(salu("s_sub_u32", S(10), S(10), sB))
    if os.environ.get("K2NOW"): p.append(salu("s_mov_b32", S(10), 0))
    p.append(salu("s_lshl_b32", sA, sMT, 2))
    p.append(salu("s_add_u32", sA, sA, sW))
    p.append(salu("s_mul_i32", sB, sA, ACT_TB32))
    p.append(salu("s_lshl_b32", sT1, sT1, 11))
    p.append(salu("s_add_u32", sB, sB, sT1))
    p.append(salu("s_add_u32", sB, sB, ACT_OFF))
    srd(p, 12, 20, 0, sB)
    p.append(salu("s_lshl_b32", S(14), sNKS, 11))
    if os.environ.get("K2NOA"): p.append(salu("s_mov_b32", S(14), 0))
    p.append(salu("s_mul_i32", sB, sSP, PART_SP))
    p.append(salu("s_mul_i32", sA, sA, 72 * 1024))
    p.append(salu("s_add_u32", sB, sB, sA))
    p.append(salu("s_mul_i32", sA, sNT, 9 * 1024))
    p.append(salu("s_add_u32", sB, sB, sA))
    p.append(salu("s_add_u32", sB, sB, PART_OFF))
    srd(p, 16, 20, (36 + 9) * 1024, sB)
    VO = V(4, 9)
    p.append(salu("s_mov_b32", sA, (2**32 + 17) // 18))
    p.append(salu("s_mul_i32", sB, sW, 32 * 1152))
    for n in range(9):
        p.append(valu("v_add_u32", V(13), 64 * n, lane))
        p.append(valu("v_mul_hi_u32", V(14), V(13), sA))
        p.append(valu("v_mul_u32_u24", V(15), 18, V(14)))
        p.append(valu("v_sub_u32", V(13), V(13), V(15)))
        p.append(valu("v_mul_u32_u24", V(14), 1152, V(14)))
        p.append(valu("v_lshl_add_u32", V(13), V(13), 4, V(14)))
        p.append(valu("v_add_u32", VO[n], sB, V(13)))
    vB = V(16)
    p.append(valu("v_lshlrev_b32", vB, 4, lane))
    RA = V(17, 4)
    p.append(valu("v_lshrrev_b32", V(13), 2, lane))
    p.append(valu("v_mul_u32_u24", V(13), 288, V(13)))
    p.append(valu("v_and_b32", V(14), 3, lane))
    p.append(valu("v_lshl_add_u32", RA[0], V(14), 3, V(13)))
    for s in range(1, 4): p.append(valu("v_add_u32", RA[s], 36864 * s, RA[0]))
    sM0, sWO, sAO, sCnt = S(30), S(31), S(32), S(33)
    p.append(salu("s_mul_i32", sM0, sW, 9216))
    p.append(salu("s_mov_b32", sWO, 0))
    p.append(salu("s_mov_b32", sAO, 0))
    p.append(salu("s_lshr_b32", sCnt, sNKS, 3))
    ACC = A(0, 72); NAF = 12; AF = A(72, 4 * NAF); BF = V(128, 128)

    def loads(st):
        l = []
        sl = st % 4
        for n in range(9):
            l.append(salu("s_add_u32", "m0", sM0, sl * 36864 + n * 1024))
            l.append(dma(VO[n], S(8, 4), sWO, 0, [(("w", sl), ("W", st))]))
            if n < 8:
                if n == 4: l.append(salu("s_add_u32", sAO, sAO, 4096))
                f = sl * 8 + n
                l.append(bload(BF[4 * f:4 * f + 4], vB, S(12, 4), sAO, (n % 4) * 1024).tag(prod=("B", st, n)))
        l.append(salu("s_add_u32", sAO, sAO, 4096))
        l.append(salu("s_add_u32", sWO, sWO, 128 * 1152))
        return l

    def aread(st, f, valid=True):
        ks, nt = f // 9, f % 9
        gi = st * 36 + f
        d = AF[4 * (gi % NAF):4 * (gi % NAF) + 4]
        off = ks * 9216 + nt * 32
        m = (("w", st % 4), ("W", st) if valid else None)
        return [dsr("ds_read_b64_tr_b16", d[0:2], RA[st % 4], off, m).tag(prod=("A", gi)),
                dsr("ds_read_b64_tr_b16", d[2:4], RA[st % 4], off + 16 * 288, m).tag(prod=("A", gi))]

    for st in range(3): p += loads(st)
    for i in range(72): p.append(valu("v_accvgpr_write_b32", ACC[i], 0))
    NST = 18
    BARG = 2 * 29
    mf = []; fl = []
    pre = []
    for st in range(NST + 1):
        base = st * 72
        bg = base - 72 + BARG
        seq = [waitlgkm(0), waitdma(lambda c, st=st: c == ("W", st)), barrier()]
        if st == 0: pre += seq[1:]
        else:
            w = waitboth(34, 0)
            fl.append(w.when(bg - 1, bg - 1)); fl.append(barrier().when(bg, bg))
        for f in range(36):
            gi = st * 36 + f
            use = base + 2 * f
            at = max(use - 2 * (NAF - 1), bg + 1 + f if f < 12 else -10**9)
            if st == NST and at >= base: continue
            rr = aread(st, f, st < NST)
            if at < 0: pre += rr
            else:
                for r in rr: fl.append(r.when(at, use - 4))
        if st == NST: break
        fl.append(label(f"@ST{st}").when(base - 1))
        for f in range(36):
            ks, nt = f // 9, f % 9
            gi = st * 36 + f
            a = AF[4 * (gi % NAF):4 * (gi % NAF) + 4]
            for tb in range(2):
                bi = (st % 4) * 8 + ks * 2 + tb
                b = BF[4 * bi:4 * bi + 4]
                c = ACC[(nt * 2 + tb) * 4:(nt * 2 + tb) * 4 + 4]
                mf.append(mfma(c, a, b, c).tag(cons=[(a, ("A", gi)), (b, ("B", st, ks * 2 + tb))]))
        l = loads(st + 3)
        g = base + 1
        for ins in l:
            fl.append(ins.when(g, base + BARG - 2))
            if ins.k != "salu": g += 3
    fl = [f for f in fl if f.k != "label"]
    body, left = schedule(mf, fl)
    assert not left
    full = insert_waits(p + pre + body)
    rep = []
    full, nfix = fix_hazards(full, rep)
    assert check_lds(full) == 0
    assert check_tags(full) == 0
    idx = [i for i, ins in enumerate(full) if ins.k == "mfma"]
    cuts = [idx[72 * s] for s in range(NST)] + [len(full)]
    stages = [full[cuts[s]:cuts[s + 1]] for s in range(NST)]
    for s in range(4, NST):
        if text(stages[s]) != text(stages[s - 4]):
            import difflib
            df = [l for l in difflib.unified_diff(text(stages[s - 4]).split("\n"), text(stages[s]).split("\n"), lineterm="", n=0) if l[0] in "+-" and l[:3] not in ("---", "+++")]
            if s == NST - 1 and all(l.startswith("- s_waitcnt") for l in df): continue
            print(df)
            raise RuntimeError(f"stage {s} not periodic")
    print("K2 stage est cycles:", [est_cycles(stages[s]) for s in range(4)], "nops fixed:", rep[:5])
    out = full[:cuts[0]]
    out += st_()
    out.append(label("L_k2_loop"))
    out += stages[0] + stages[1]
    out.append(salu("s_sub_u32", sCnt, sCnt, 1))
    out.append(salu("s_cmp_eq_u32", sCnt, 0))
    out.append(branch("s_cbranch_scc1", "L_k2_epi"))
    out += stages[2] + stages[3]
    out.append(salu("s_sub_u32", sCnt, sCnt, 1))
    out.append(salu("s_cmp_eq_u32", sCnt, 0))
    out.append(branch("s_cbranch_scc0", "L_k2_loop"))
    out.append(label("L_k2_epi"))
    out += st_()
    out.append(nop(7))
    for tb in range(2):
        for nt in range(9):
            c = ACC[(nt * 2 + tb) * 4:(nt * 2 + tb) * 4 + 4]
            o = (tb * 36 + nt) * 1024
            out.append(salu("s_mov_b32", sA, o & ~4095))
            out.append(bstore(c, vB, S(16, 4), sA, o & 4095))
    if STAMPS: out.append(raw("s_waitcnt vmcnt(0)", "salu"))
    out += st_() + st_(True) + st_.dump(20)
    out.append(label("L_k2_end"))
    out.append(raw("s_endpgm"))
    return kernel_text("gemm2_kernel", out, 256 + 120, 256, 102 if STAMPS else 40)
```
